```python
import torch

def _softmax(x, axis=-1):
    return torch.softmax(x, dim=axis)
def _gelu(x):
    return torch.nn.functional.gelu(x, approximate="tanh")
def _silu(x):
    return torch.nn.functional.silu(x)
def _sigmoid(x):
    return torch.sigmoid(x)
def _layernorm(x, axis=-1, eps=1e-5):
    m = x.mean(dim=axis, keepdim=True)
    v = x.var(dim=axis, keepdim=True, unbiased=False)
    return (x - m) / torch.sqrt(v + eps)
def _scatter_add(tgt, idx, src, axis=0):
    return tgt.clone().index_add_(axis, idx, src)
def _segment_sum(src, seg, n):
    out = torch.zeros((n,) + src.shape[1:], dtype=src.dtype)
    return out.index_add_(0, seg, src)
def _pad(x, pw):
    flat = tuple(v for pair in reversed(pw) for v in pair)
    return torch.nn.functional.pad(x, flat)

kernel_name = 'concat_heads__linear_attn_block__spectral_gfnet__prompt'

def setup_inputs():

    _w = (lambda a: (lambda t: t.to(torch.bfloat16) if t.is_floating_point() else t)(torch.as_tensor(a)))
    def _A_setup():
        B, S, D = 1, 2048, 1024
        return {
            "x": _w((lambda *s: torch.randn(*s, dtype=torch.bfloat16) * 0.05)(B, S, D)),
            "wqkv": _w((lambda *s: torch.randn(*s, dtype=torch.bfloat16) * 0.4)(D, 3 * D)),
            "wo": _w((lambda *s: torch.randn(*s, dtype=torch.bfloat16) * 0.05)(D, D)),
        }
    _A_in = _A_setup()

    def _B_setup():
        B, S, D = 1, 2048, 1024
        Df = D // 2 + 1
        return {
            "x": _w((lambda *s: torch.randn(*s, dtype=torch.bfloat16) * 0.05)(B, S, D)),
            "w_r": _w((lambda *s: torch.randn(*s, dtype=torch.bfloat16) * 1.6)(S, Df) * 0.02),
            "w_i": _w((lambda *s: torch.randn(*s, dtype=torch.bfloat16) * 1.6)(S, Df) * 0.02),
        }
    _B_in = _B_setup()

    return {
        "A_x": _A_in["x"],
        "A_wqkv": _A_in["wqkv"],
        "A_wo": _A_in["wo"],
        "B_x": _B_in["x"],
        "B_w_r": _B_in["w_r"],
        "B_w_i": _B_in["w_i"],
    }

def reference(A_x, A_wqkv, A_wo, B_x, B_w_r, B_w_i):
    def _A_ref(x, wqkv, wo):
        B, S, D = x.shape
        H = 32; Dh = D // H
        qkv = (lambda x, *d: x.permute(*d))((x @ wqkv).reshape(B, S, 3, H, Dh), 2, 0, 3, 1, 4)
        q, k, v = qkv[0], qkv[1], qkv[2]
        phi = lambda t: torch.where(t > 0, t + 1, torch.exp(t)) + 1e-6
        pq, pk = phi(q), phi(k)
        kv = torch.einsum("bhsd,bhse->bhde", pk, v)
        z = torch.einsum("bhsd->bhd", pk)
        num = torch.einsum("bhqd,bhde->bhqe", pq, kv)
        den = torch.einsum("bhqd,bhd->bhq", pq, z)[..., None] + 1e-6
        o = num / den
        return (lambda x, *d: x.permute(*d))(o, 0, 2, 1, 3).reshape(B, S, D) @ wo

    def _B_ref(x, w_r, w_i):
        B, S, D = x.shape
        X = (lambda x, axes=(-2,-1): torch.fft.rfft2(x.float(), dim=axes))(x, axes=(-2, -1))
        W = w_r + 1j * w_i
        X = X * W
        y = (lambda x, s, axes=(-2,-1): torch.fft.irfft2(x, s=s, dim=axes).to(torch.bfloat16))(X, (S, D), axes=(-2, -1))
        return y

    a = _A_ref(A_x, A_wqkv, A_wo)
    b = _B_ref(B_x, B_w_r, B_w_i)
    return torch.concatenate([a, b], axis=-1)
```

```python
import re

REG = re.compile(r'^(-|\|)?(abs\()?([vsa])(\d+|\[(\d+):(\d+)\])\)?\|?$')

def regs_of(tok):
    tok = tok.strip()
    if tok in ('vcc',): return [('s', 'vcc')]
    if tok in ('exec',): return [('s', 'exec')]
    if tok == 'm0': return [('s', 'm0')]
    if tok == 'scc': return []
    m = REG.match(tok)
    if not m: return []
    kind = m.group(3)
    if m.group(5) is not None:
        return [(kind, i) for i in range(int(m.group(5)), int(m.group(6)) + 1)]
    return [(kind, int(m.group(4)))]

TRANS = ('v_exp_f32', 'v_log_f32', 'v_rcp_f32', 'v_rsq_f32', 'v_sqrt_f32', 'v_sin_f32', 'v_cos_f32', 'v_rcp_iflag_f32')

class I:
    __slots__ = ('text', 'op', 'ops', 'dst', 'src', 'kind', 'tag', 'need', 'mods')
    def __init__(self, text, tag=None, need=None):
        self.text = text; self.tag = tag; self.need = need
        t = text.split(';')[0].strip()
        self.dst = []; self.src = []; self.kind = 'other'; self.mods = ''
        if t.endswith(':'):
            self.op = 'label'; self.kind = 'label'; self.ops = []; return
        parts = t.split(None, 1)
        self.op = op = parts[0]
        rest = parts[1] if len(parts) > 1 else ''
        raw = [x.strip() for x in rest.split(',')] if rest else []
        ops = []
        mods = []
        for x in raw:
            w = x.split()
            if w:
                ops.append(w[0]); mods += w[1:]
        self.ops = ops; self.mods = ' '.join(mods)
        R = lambda i: regs_of(ops[i]) if i < len(ops) else []
        allr = lambda a: sum((R(i) for i in range(a, len(ops))), [])
        if op.startswith('v_mfma'):
            self.kind = 'mfma'; self.dst = R(0); self.src = allr(1)
        elif op.startswith('v_'):
            self.kind = 'trans' if op.replace('_e32', '').replace('_e64', '') in TRANS else 'valu'
            base = op
            if base.startswith('v_cmp'):
                self.dst = R(0); self.src = allr(1)
            elif base.startswith('v_permlane'):
                self.dst = R(0) + R(1); self.src = R(0) + R(1); self.kind = 'permlane'
            elif base.startswith(('v_add_co', 'v_sub_co', 'v_addc_co', 'v_subb_co')):
                self.dst = R(0) + R(1); self.src = allr(2)
            elif base.startswith(('v_fmac', 'v_mac', 'v_dot2c')):
                self.dst = R(0); self.src = allr(0)
            elif base.startswith('v_readfirstlane') or base.startswith('v_readlane'):
                self.dst = R(0); self.src = allr(1); self.kind = 'readlane'
            elif base.startswith('v_writelane'):
                self.dst = R(0); self.src = allr(0)
            else:
                self.dst = R(0); self.src = allr(1)
                if base.startswith('v_cndmask') and len(ops) == 3: self.src += [('s', 'vcc')]
            if op.startswith('v_dot'): self.kind = 'dot'
            if 'dpp' in self.mods or 'row_' in self.mods or 'quad_perm' in self.mods: self.kind = 'dpp'
        elif op.startswith('ds_'):
            if op.startswith(('ds_read', 'ds_bpermute', 'ds_permute', 'ds_swizzle')):
                self.kind = 'dsread'; self.dst = R(0); self.src = allr(1)
            else:
                self.kind = 'dswrite'; self.src = allr(0)
        elif op.startswith(('buffer_load', 'global_load')):
            if 'lds' in self.mods.split() or op.startswith('global_load_lds'):
                self.kind = 'dma'; self.src = allr(0) + [('s', 'm0')]
            else:
                self.kind = 'vload'; self.dst = R(0); self.src = allr(1)
        elif op.startswith(('buffer_store', 'global_store')):
            self.kind = 'vstore'; self.src = allr(0)
        elif op.startswith(('buffer_atomic', 'global_atomic')):
            self.kind = 'vatomic'; self.src = allr(0)
            if 'sc0' in self.mods.split(): self.dst = R(0)
        elif op.startswith('s_load') or op in ('s_memtime', 's_memrealtime'):
            self.kind = 'smem'; self.dst = R(0); self.src = allr(1)
        elif op == 's_waitcnt':
            self.kind = 'wait'
        elif op == 's_barrier':
            self.kind = 'barrier'
        elif op == 's_nop':
            self.kind = 'nop'
        elif op.startswith(('s_cbranch', 's_branch', 's_endpgm', 's_setpc', 's_swappc')):
            self.kind = 'branch'
        elif op.startswith('s_'):
            self.kind = 'salu'
            if op.startswith('s_cmp') or op.startswith('s_bitcmp'):
                self.src = allr(0)
            elif op in ('s_setprio', 's_sleep'):
                pass
            else:
                self.dst = R(0); self.src = allr(1)
                if op.startswith(('s_addk', 's_mulk')): self.src += R(0)
                if 'saveexec' in op: self.dst += [('s', 'exec')]; self.src += [('s', 'exec')]
    def ws(self):
        if self.kind == 'nop': return int(self.ops[0], 0) + 1
        if self.kind in ('label',): return 0
        return 1

VALUK = ('valu', 'trans', 'permlane', 'readlane', 'dot', 'dpp')
VMK = ('dma', 'vload', 'vstore', 'vatomic')

class Prog:
    def __init__(self):
        self.ins = []
        self._lbl = 0
    def __call__(self, s, tag=None, need=None):
        for l in s.split('\n'):
            l = l.strip()
            if not l or l.startswith(';') or l.startswith('#'): continue
            self.ins.append(I(l, tag, need))
    def wait_dma(self, tags):
        i = I('s_nop 0'); i.kind = 'waittag'; i.need = set(tags) if not isinstance(tags, str) else {tags}
        self.ins.append(i)
    def barrier(self, tags=None):
        if tags is not None: self.wait_dma(tags)
        self('s_barrier')
    def stamp(self, name=''): pass
    def reset(self):
        i = I('s_nop 0'); i.kind = 'reset'; self.ins.append(i)
    def raw(self, s):
        i = I('s_nop 0'); i.kind = 'raw'; i.text = s; self.ins.append(i)

    def finalize(self, verbose=False):
        out = []
        vmq = []
        lgq = []
        smem_pending = False
        hist = []
        nops_inserted = 0
        def emit(i):
            out.append(i)
            hist.append(i)
            if len(hist) > 40: del hist[0]
        def need_ws(i):
            need = 0
            dist = 0
            S = set(i.src); D = set(i.dst)
            vS = {r for r in S if r[0] in 'va'}; vD = {r for r in D if r[0] in 'va'}
            for p in reversed(hist):
                req = 0
                pD = set(p.dst); pS = set(p.src)
                pvD = {r for r in pD if r[0] in 'va'}
                psD = {r for r in pD if r[0] == 's'}
                if p.kind == 'mfma':
                    if i.kind == 'mfma':
                        a = set(regs_of(i.ops[1])) | set(regs_of(i.ops[2])); c = set(regs_of(i.ops[3]))
                        if pvD & a: req = max(req, 12)
                        if pvD & c and not (c == pvD): req = max(req, 10)
                        if pvD & vD and not (vD == pvD): req = max(req, 12)
                    else:
                        if i.kind in VALUK:
                            if pvD & (vS | vD): req = max(req, 12)
                            pc = set(regs_of(p.ops[3]))
                            if pc & vD: req = max(req, 7)
                        elif i.kind in VMK or i.kind in ('dsread', 'dswrite'):
                            if pvD & (vS | vD): req = max(req, 12)
                            pc = set(regs_of(p.ops[3]))
                            if pc & vD: req = max(req, 7)
                elif p.kind in VALUK:
                    if i.kind == 'mfma' and pvD & vS: req = max(req, 2)
                    if i.kind == 'readlane' and pvD & vS: req = max(req, 1)
                    if i.kind == 'permlane' and pvD & (vS | vD): req = max(req, 2)
                    if i.kind == 'dpp' and pvD & vS: req = max(req, 2)
                    if p.kind == 'trans' and i.kind in VALUK + ('mfma',) and pvD & (vS | vD): req = max(req, 2 if i.kind == 'mfma' else 1)
                    if p.kind == 'trans' and (i.kind in VMK or i.kind.startswith('ds')) and pvD & vS: req = max(req, 1)
                    if p.kind == 'dot' and pvD & (vS | vD) and p.op != i.op: req = max(req, 3)
                    if p.kind == 'dot' and p.op == i.op and pvD & set(sum((regs_of(o) for o in i.ops[1:3]), [])): req = max(req, 3)
                    if psD:
                        if i.kind in VMK and psD & S: req = max(req, 5)
                        if i.kind in VALUK and psD & S: req = max(req, 4 if i.kind == 'readlane' else 2)
                        if i.kind == 'mfma' and ('s', 'exec') in psD: req = max(req, 4)
                        if i.kind == 'salu' and psD & S: req = max(req, 1)
                elif p.kind == 'salu':
                    if ('s', 'm0') in pD and i.kind == 'dma': req = max(req, 1)
                elif p.kind in ('vstore', 'vatomic'):
                    if ('x4' in p.op or 'x3' in p.op) and (vD & set(regs_of(p.ops[0]))):
                        req = max(req, 2)
                elif p.kind == 'dswrite':
                    pass
                if req > dist: need = max(need, req - dist)
                dist += p.ws()
                if dist >= 20: break
            return need
        def mkwait(vm=None, lg=None):
            s = 's_waitcnt'
            if vm is not None: s += f' vmcnt({vm})'
            if lg is not None: s += f' lgkmcnt({lg})'
            return I(s)
        for i in self.ins:
            if i.kind == 'reset':
                vmq.clear(); lgq.clear(); hist.clear(); continue
            if i.kind == 'raw':
                emit(i); continue
            if i.kind == 'waittag':
                idx = -1
                for n, e in enumerate(vmq):
                    if e[0] in i.need: idx = n
                if idx >= 0:
                    left = len(vmq) - idx - 1
                    assert left <= 63, left
                    emit(mkwait(vm=left)); del vmq[:idx + 1]
                continue
            if i.kind == 'label':
                if vmq or lgq:
                    emit(mkwait(vm=0 if vmq else None, lg=0 if lgq else None)); vmq.clear(); lgq.clear()
                emit(i); continue
            if i.kind == 'wait':
                m = re.search(r'vmcnt\((\d+)\)', i.text)
                if m:
                    n = int(m.group(1))
                    if len(vmq) > n: del vmq[:len(vmq) - n]
                m = re.search(r'lgkmcnt\((\d+)\)', i.text)
                if m:
                    n = int(m.group(1))
                    if n == 0: lgq.clear()
                    elif not any(e[0] == 'smem' for e in lgq) and len(lgq) > n: del lgq[:len(lgq) - n]
                emit(i); continue
            use = set(i.src) | set(i.dst)
            vmw = None; lgw = None
            for n, e in enumerate(vmq):
                if set(e[1]) & use: vmw = len(vmq) - n - 1
            for n, e in enumerate(lgq):
                if set(e[1]) & use: lgw = len(lgq) - n - 1
            if i.kind == 'barrier' and lgq: lgw = 0
            if i.kind == 'branch' and i.op == 's_endpgm': pass
            if lgw is not None and any(e[0] == 'smem' for e in lgq): lgw = 0
            if vmw is not None or lgw is not None:
                if vmw is not None: assert vmw <= 63
                if lgw is not None and lgw > 15: lgw = 15
                emit(mkwait(vmw, lgw))
                if vmw is not None: del vmq[:len(vmq) - vmw]
                if lgw is not None:
                    if lgw == 0: lgq.clear()
                    else: del lgq[:len(lgq) - lgw]
            n = need_ws(i)
            while n > 0:
                k = min(n, 16)
                emit(I(f's_nop {k-1}')); nops_inserted += 1; n -= k
            emit(i)
            if i.kind in VMK:
                vmq.append((i.tag, i.dst))
                if len(vmq) > 63:
                    raise Exception('vmcnt overflow >63 at ' + i.text)
            elif i.kind in ('dsread', 'dswrite'):
                lgq.append((i.kind, i.dst))
            elif i.kind == 'smem':
                lgq.append(('smem', i.dst))
            if i.kind == 'branch' and i.op in ('s_branch', 's_endpgm'):
                vmq.clear(); lgq.clear(); hist.clear()
        lines = []
        for i in out:
            t = i.text
            lines.append(t if i.kind == 'label' else '  ' + t)
        if verbose: print('instrs', len(out), 'nops', nops_inserted)
        return lines

class Module:
    def __init__(self):
        self.head = []; self.body = []; self.desc = []; self.rodata = []
    def launch(self, kname, grid, block=256, lds=0):
        self.head.append(f"; @launch kernel={kname} grid=({grid},1,1) block=({block},1,1) lds={lds}")
    def add_kernel(self, kname, prog, vgpr=256, sgpr=102, accum=None, verbose=False):
        if accum is None: accum = (vgpr + 3) // 4 * 4
        self.body += [f".globl {kname}", ".p2align 8", f".type {kname},@function", f"{kname}:"]
        self.body += prog.finalize(verbose)
        self.desc += [".p2align 6", f".amdhsa_kernel {kname}", f"  .amdhsa_next_free_vgpr {vgpr}", f"  .amdhsa_next_free_sgpr {sgpr}",
                      f"  .amdhsa_accum_offset {accum}", "  .amdhsa_group_segment_fixed_size 0", "  .amdhsa_kernarg_size 72",
                      "  .amdhsa_user_sgpr_count 2", "  .amdhsa_user_sgpr_kernarg_segment_ptr 1", "  .amdhsa_system_sgpr_workgroup_id_x 1", ".end_amdhsa_kernel"]
    def text(self, comment_head=""):
        out = []
        if comment_head: out += ["; " + l for l in comment_head.split("\n")]
        out += self.head
        out += ['.amdgcn_target "amdgcn-amd-amdhsa--gfx950"', ".text"]
        out += self.body
        out += ['.section .rodata,"a"'] + self.desc + self.rodata
        return "\n".join(out) + "\n"
```

```python
import sys
from fw import *
import genA
NAME = "concat_heads__linear_attn_block__spectral_gfnet__prompt"
class PProxy:
    def __init__(self, p, lab): self.p = p; self.lab = lab
    def __call__(self, s, tag=None, need=None):
        if s.strip() == 's_endpgm': self.p(f's_branch {self.lab}')
        else: self.p(s, tag, need)
    def __getattr__(self, n): return getattr(self.p, n)
class SProxy(PProxy):
    def __init__(self, p, lab): super().__init__(p, lab); self.n = 0; self.names = []
    def stamp(self, name=''):
        if self.n >= 34: return
        if self.n > 0: self.p(f's_mov_b32 s{59+self.n}, s96')
        self.p('s_memtime s[96:97]')
        self.names.append(name); self.n += 1
def build(roles, path, lds=81920, prof=False, head="", vgpr=256, stamp=None, stamp_wg=0):
    m = Module()
    for kname, parts in roles:
        total = sum(c for c, _ in parts)
        m.launch(kname, total, 256, lds)
        p = Prog()
        if prof: p('s_memrealtime s[100:101]')
        genA.load_ptrs(p)
        base = 0
        for n, (c, f) in enumerate(parts):
            base += c
            p(f's_cmp_lt_u32 s2, {base}')
            p(f's_cbranch_scc1 {kname}_r{n}')
        p('s_endpgm')
        base = 0
        for n, (c, f) in enumerate(parts):
            p.raw(f'{kname}_r{n}:')
            p.reset()
            p('s_waitcnt lgkmcnt(0)')
            if base: p(f's_sub_u32 s2, s2, {base}')
            if prof:
                f(PProxy(p, f'{kname}_e{n}'))
                p.raw(f'{kname}_e{n}:'); p.reset()
                p('s_waitcnt vmcnt(0) lgkmcnt(0)')
                p('s_memrealtime s[98:99]')
                p('s_waitcnt lgkmcnt(0)')
                genA.srd(p, 24, 18, 256)
                p('s_not_b32 s100, s100')
                p('v_mov_b32 v2, s100'); p('v_mov_b32 v3, s98')
                p('v_mov_b32 v4, 0')
                p('v_cmp_eq_u32 vcc, 0, v0')
                p('s_and_saveexec_b64 s[96:97], vcc')
                p(f'buffer_atomic_umax v2, v4, s[24:27], 0 offen offset:{16*n}')
                p(f'buffer_atomic_umax v3, v4, s[24:27], 0 offen offset:{16*n+4}')
                p('s_not_b32 s100, s100'); p('s_not_b32 s98, s98')
                p('v_mov_b32 v5, s100'); p('v_mov_b32 v6, s98')
                p(f'buffer_atomic_umax v5, v4, s[24:27], 0 offen offset:{16*n+8}')
                p(f'buffer_atomic_umax v6, v4, s[24:27], 0 offen offset:{16*n+12}')
                p('s_endpgm')
            elif stamp is not None:
                sp = SProxy(p, f'{kname}_e{n}')
                p('s_memrealtime s[98:99]')
                p('s_mov_b32 s95, s2')
                sp.stamp('start')
                f(sp)
                p.raw(f'{kname}_e{n}:'); p.reset()
                p('s_waitcnt vmcnt(0) lgkmcnt(0)')
                sp.stamp('end')
                p('s_memrealtime s[100:101]')
                p('s_waitcnt lgkmcnt(0)')
                p(f's_mov_b32 s{59+sp.n}, s96')
                p('s_sub_u32 s100, s100, s98')
                p('v_mov_b32 v10, 0')
                for q in range(sp.n): p(f'v_writelane_b32 v10, s{60+q}, {q}')
                p('v_writelane_b32 v10, s100, 63')
                genA.srd(p, 24, 18, 256)
                p('v_and_b32 v11, 63, v0'); p('v_lshlrev_b32 v11, 2, v11')
                p(f's_cmp_eq_u32 s95, {stamp_wg}')
                p(f's_cbranch_scc0 {kname}_sk{n}')
                p('v_readfirstlane_b32 s40, v0'); p('s_cmp_eq_u32 s40, 0')
                p(f's_cbranch_scc0 {kname}_sk{n}')
                if n == stamp.get(kname, 0): p('buffer_store_dword v10, v11, s[24:27], 0 offen')
                p.raw(f'{kname}_sk{n}:'); p.reset()
                p('s_endpgm')
                print(kname, n, 'stamps', sp.names)
            else:
                f(p)
            base += c
        m.add_kernel(kname, p, verbose=True, vgpr=vgpr)
    open(path, 'w').write(m.text(head))
```

```python
from fw import *

WS_KVP = 0
WS_ZP  = 1 << 20
WS_OF  = 2 << 20
WS_X1  = 6 << 20
WS_X2  = 11 << 20
WS_WP  = 16 << 20
WS_SIZE = 268435456

def load_ptrs(p):
    p('s_load_dwordx16 s[4:19], s[0:1], 0')
    p('s_load_dwordx2 s[20:21], s[0:1], 64')

def srd(p, d, base, nbytes, off=0):
    if off:
        p(f's_add_u32 s{d}, s{base}, {off}')
        p(f's_addc_u32 s{d+1}, s{base+1}, 0')
    else:
        p(f's_mov_b32 s{d}, s{base}')
        p(f's_mov_b32 s{d+1}, s{base+1}')
    p(f's_mov_b32 s{d+2}, {nbytes}')
    p(f's_mov_b32 s{d+3}, 0x00020000')

def interleave(p, mf, fill, first=0):
    for n, m in enumerate(mf):
        p(m)
        if n < len(fill):
            for f in fill[n]:
                if isinstance(f, tuple): p(f[0], tag=f[1])
                else: p(f)
    for n in range(len(mf), len(fill)):
        for f in fill[n]:
            if isinstance(f, tuple): p(f[0], tag=f[1])
            else: p(f)

def tile_ids(p, G, a=2):
    la = {1: 0, 2: 1, 4: 2, 8: 3}[a]
    mper = 16 // a; lm = {16: 4, 8: 3, 4: 2, 2: 1}[mper]
    p('v_lshrrev_b32 v1, 6, v0')
    p('s_and_b32 s44, s2, 7')
    p('v_readfirstlane_b32 s40, v1')
    p('s_lshr_b32 s45, s2, 3')
    p(f's_and_b32 s41, s44, {a-1}')
    p(f's_lshl_b32 s41, s41, {lm}')
    p(f's_and_b32 s46, s45, {mper-1}')
    p('s_add_u32 s41, s41, s46')
    p(f's_lshr_b32 s42, s44, {la}')
    p(f's_lshl_b32 s42, s42, {5-lm}')
    p(f's_lshr_b32 s46, s45, {lm}')
    p('s_add_u32 s42, s42, s46')
    if G > 1:
        p('s_add_u32 s43, s41, s42')
        p(f's_and_b32 s43, s43, {G-1}')
        p(f's_mul_i32 s43, s43, {16//G}')
    else:
        p('s_mov_b32 s43, 0')
    p('v_and_b32 v1, 63, v0')

def x_dma_addr(p, vbase, smi):
    p(f's_lshl_b32 s46, s{smi}, 7')
    p('s_lshl_b32 s47, s40, 5')
    p('s_add_u32 s46, s46, s47')
    p('v_lshrrev_b32 v20, 3, v1')
    p('v_add_u32 v20, s46, v20')
    p('v_lshlrev_b32 v20, 11, v20')
    p('v_lshrrev_b32 v21, 4, v1')
    p('v_and_b32 v22, 7, v1')
    for pp in range(4):
        if pp & 1: p('v_xor_b32 v23, 4, v21')
        else: p('v_mov_b32 v23, v21')
        p('v_xor_b32 v23, v22, v23')
        p('v_lshlrev_b32 v23, 4, v23')
        p(f'v_add_u32 v23, v20, v23')
        p(f'v_add_u32 v{vbase+pp}, {8*pp*2048 - 1024*pp}, v23')

def x_lds_addr(p, vbase, rowsel):
    p('v_and_b32 v20, 31, v1')
    p(f's_lshl_b32 s46, s{rowsel}, 6')
    p('v_add_u32 v20, s46, v20')
    p('v_lshlrev_b32 v20, 7, v20')
    p('v_lshrrev_b32 v21, 5, v1')
    p('v_bfe_u32 v22, v1, 1, 3')
    for t in range(4):
        p(f'v_or_b32 v23, {2*t}, v21')
        p('v_xor_b32 v23, v23, v22')
        p('v_lshlrev_b32 v23, 4, v23')
        p(f'v_add_u32 v{vbase+t}, v20, v23')

LOG2E = '0x3fb8aa3b'
EPS = '0x358637bd'
def phi(p, r, tmp):
    p(f'v_mul_f32 v{tmp}, {LOG2E}, v{r}')
    p(f'v_exp_f32_e64 v{tmp}, v{tmp} clamp')
    p(f'v_max_f32 v{r}, 0, v{r}')
    p(f'v_add_f32 v{r}, {EPS}, v{r}')
    p(f'v_add_f32 v{r}, v{r}, v{tmp}')

def phi_block(p, regs, tmp0):
    for g in range(0, len(regs), 4):
        q = regs[g:g+4]
        for n, r in enumerate(q): p(f'v_mul_f32 v{tmp0+n}, {LOG2E}, v{r}')
        for n, r in enumerate(q): p(f'v_exp_f32_e64 v{tmp0+n}, v{tmp0+n} clamp')
        for n, r in enumerate(q): p(f'v_max_f32 v{r}, 0, v{r}')
        for n, r in enumerate(q): p(f'v_add_f32 v{r}, {EPS}, v{r}')
        for n, r in enumerate(q): p(f'v_add_f32 v{r}, v{r}, v{tmp0+n}')

def vr(a, n): return f'v[{a}:{a+n-1}]'

def gen_A1(p, G=4, a=2, stamp=False, nodma=False, nomfma=False, noread=False, stagger=False, nobar=False):
    nst = [0]
    def st():
        if not stamp: return
        if nst[0] > 0: p(f's_mov_b32 s{59+nst[0]}, s56')
        p('s_memtime s[56:57]')
        nst[0] += 1
    if stamp:
        p('s_memrealtime s[98:99]')
        st()
    tile_ids(p, G, a)
    p('s_and_b32 s48, s40, 1')
    p('s_lshr_b32 s49, s40, 1')
    srd(p, 24, 4, 2048*2048)
    srd(p, 28, 6, 1024*6144)
    srd(p, 32, 20, 1 << 20, WS_KVP)
    srd(p, 36, 20, 128 << 10, WS_ZP)
    VX = 2; VW = 6; VA = 8; VBK = 12; VBV = 13
    x_dma_addr(p, VX, 41)
    p('v_lshrrev_b32 v20, 4, v1')
    p('s_lshl_b32 s46, s40, 3')
    p('v_add_u32 v21, s46, v20')
    p('s_mov_b32 s47, 6144')
    p('v_mul_lo_u32 v21, v21, s47')
    p('v_bfe_u32 v22, v1, 2, 2')
    p('v_xor_b32 v22, v22, v20')
    p('v_and_b32 v23, 1, v22')
    p('v_lshlrev_b32 v23, 6, v23')
    p('v_lshrrev_b32 v22, 1, v22')
    p('v_lshlrev_b32 v22, 11, v22')
    p('v_add3_u32 v21, v21, v22, v23')
    p('v_and_b32 v22, 3, v1')
    p('v_lshlrev_b32 v22, 4, v22')
    p('s_lshl_b32 s46, s42, 7')
    p('s_add_u32 s46, s46, 2048')
    p(f'v_add3_u32 v{VW}, v21, v22, s46')
    p(f'v_add_u32 v{VW+1}, {4*6144-1024}, v{VW}')
    x_lds_addr(p, VA, 49)
    p('v_lshrrev_b32 v20, 5, v1')
    p('v_lshlrev_b32 v20, 3, v20')
    p('v_bfe_u32 v21, v1, 2, 2')
    p('v_add_u32 v20, v20, v21')
    p('v_lshlrev_b32 v20, 8, v20')
    p('v_and_b32 v22, 3, v1')
    p('v_lshlrev_b32 v22, 3, v22')
    p('v_add_u32 v20, v20, v22')
    p('v_add_u32 v20, 49152, v20')
    p('v_bfe_u32 v22, v1, 4, 1')
    p('v_xor_b32 v23, s48, v21')
    p('v_lshlrev_b32 v23, 6, v23')
    p('v_xor_b32 v24, s49, v22')
    p('v_lshlrev_b32 v24, 5, v24')
    p(f'v_add3_u32 v{VBK}, v20, v23, v24')
    p('s_or_b32 s46, s48, 2')
    p('v_xor_b32 v23, s46, v21')
    p('v_lshlrev_b32 v23, 6, v23')
    p('v_lshlrev_b32 v24, 5, v22')
    p(f'v_add3_u32 v{VBV}, v20, v23, v24')
    p('s_lshl_b32 s50, s40, 12')
    p('s_lshl_b32 s51, s40, 11')
    p('s_add_u32 s51, s51, 49152')
    p('s_lshl_b32 s52, s43, 7')
    p('s_lshl_b32 s53, s43, 1')
    p('s_mul_i32 s54, s53, 196608')

    def xdma(stage, half):
        buf = stage % 3
        it = [f's_add_u32 m0, s50, {buf*16384}']
        for pp in (2*half, 2*half+1):
            it.append((f'buffer_load_dwordx4 v{VX+pp}, s[24:27], s52 offen' + (f' offset:{1024*pp}' if pp else '') + ' lds', f'x{stage}'))
        if half == 1:
            it += ['s_add_u32 s52, s52, 128', 's_and_b32 s52, s52, 0x7ff']
        return it
    def wdma(j):
        slot = j % 4
        it = [f's_add_u32 m0, s51, {slot*8192}']
        it.append((f'buffer_load_dwordx4 v{VW}, s[28:31], s54 offen lds', f'w{j}'))
        it.append((f'buffer_load_dwordx4 v{VW+1}, s[28:31], s54 offen offset:1024 lds', f'w{j}'))
        it += ['s_add_u32 s53, s53, 1', 's_and_b32 s53, s53, 31', 's_mul_i32 s54, s53, 196608']
        return it
    def emit_items(items):
        for f in items:
            if isinstance(f, tuple): p(f[0], tag=f[1])
            else: p(f)
    emit_items(xdma(0, 0))
    emit_items(wdma(0)); emit_items(xdma(0, 1))
    emit_items(wdma(1)); emit_items(xdma(1, 0))
    emit_items(wdma(2)); emit_items(xdma(1, 1))
    emit_items(wdma(3)); emit_items(xdma(2, 0))
    SET = [128, 160]
    def frA(st, tb, tt): return SET[st] + (tb*2 + tt)*4
    def frB(st, kv, tt): return SET[st] + 16 + (kv*2 + tt)*4
    def reads(j):
        st = j & 1; i = j >> 1; hp = j & 1
        r = []
        for tt in range(2):
            for tb in range(2):
                r.append(f'ds_read_b128 {vr(frA(st,tb,tt),4)}, v{VA+2*hp+tt} offset:{(i%3)*16384 + tb*4096}')
            for kv in range(2):
                vb = VBK if kv == 0 else VBV
                base = (j % 4)*8192 + tt*4096
                r.append(f'ds_read_b64_tr_b16 {vr(frB(st,kv,tt),2)}, v{vb} offset:{base}')
                r.append(f'ds_read_b64_tr_b16 {vr(frB(st,kv,tt)+2,2)}, v{vb} offset:{base+1024}')
        return r
    ACC = {(0,0): 64, (0,1): 80, (1,0): 96, (1,1): 112}
    def mfmas(j):
        st = j & 1
        m = []
        for tt in range(2):
            for tb in range(2):
                for kv in range(2):
                    a = ACC[(kv,tb)]
                    c = '0' if (j == 0 and tt == 0) else vr(a,16)
                    m.append(f'v_mfma_f32_32x32x16_bf16 {vr(a,16)}, {vr(frA(st,tb,tt),4)}, {vr(frB(st,kv,tt),4)}, {c}')
        return m
    p.barrier(tags={'x0', 'w0'})
    for r in reads(0): p(r)
    p.barrier(tags={'w1', 'x0'})
    st()
    if stamp: p('s_memrealtime s[96:97]')
    for j in range(32):
        rd = reads(j+1) if j+1 < 32 else []
        fill = [[] for _ in range(8)]
        for n, r in enumerate(rd): fill[n//2].append(r)
        dm = []
        if j + 4 < 32: dm.append(wdma(j+4))
        if j & 1: st_, hf = (j-1)//2 + 3, 0
        else: st_, hf = (j-2)//2 + 3, 1
        if st_ < 16: dm.append(xdma(st_, hf))
        g = 0
        for grp in dm:
            fill[g].insert(0, grp[0])
            lds = [x for x in grp[1:] if isinstance(x, tuple)]
            rest = [x for x in grp[1:] if not isinstance(x, tuple)]
            fill[g+1].append(lds[0]); fill[g+2].append(lds[1])
            fill[g+2] += rest
            g += 3
        if nodma: fill = [[f for f in g_ if not (isinstance(f, tuple))] for g_ in fill]
        if noread: fill = [[f for f in g_ if not (isinstance(f, str) and f.startswith('ds_read'))] for g_ in fill]
        mf = mfmas(j)
        if nomfma: mf = ['s_nop 0'] * 8
        interleave(p, mf, fill)
        if j < 31:
            need = set()
            if j+2 < 32:
                need.add(f'w{j+2}'); need.add(f'x{(j+2)>>1}')
            if nobar: p.wait_dma(need); p('s_waitcnt lgkmcnt(0)')
            else: p.barrier(tags=need)
            st()
    st()
    if stamp:
        p('s_memrealtime s[58:59]')
        p('s_waitcnt lgkmcnt(0)')
        p('s_sub_u32 s97, s58, s96')
        p('s_sub_u32 s96, s96, s98')
    PK = 128; VP = 144; KV = 160; Z = 176; ONE = 192; T = 196
    for n in range(4): p(f'v_mov_b32 v{ONE+n}, 0x3f803f80')
    for tb in range(2):
        a = ACC[(1,tb)]
        for n in range(8): p(f'v_cvt_pk_bf16_f32 v{VP+tb*8+n}, v{a+2*n}, v{a+2*n+1}')
    for tb in range(2):
        a = ACC[(0,tb)]
        phi_block(p, list(range(a, a+16)), T)
        for n in range(8): p(f'v_cvt_pk_bf16_f32 v{PK+tb*8+n}, v{a+2*n}, v{a+2*n+1}')
        for s in range(2):
            c = '0' if (tb == 0 and s == 0) else vr(KV,16)
            p(f'v_mfma_f32_32x32x16_bf16 {vr(KV,16)}, {vr(PK+tb*8+s*4,4)}, {vr(VP+tb*8+s*4,4)}, {c}')
            c = '0' if (tb == 0 and s == 0) else vr(Z,16)
            p(f'v_mfma_f32_32x32x16_bf16 {vr(Z,16)}, {vr(ONE,4)}, {vr(PK+tb*8+s*4,4)}, {c}')
    p('v_lshlrev_b32 v2, 4, v1')
    p('s_lshl_b32 s46, s48, 1')
    p('s_add_u32 s47, s46, s49')
    p('s_lshl_b32 s47, s47, 11')
    p('v_add_u32 v3, s47, v2')
    p('s_xor_b32 s47, s47, 2048')
    p('v_add_u32 v4, s47, v2')
    p('s_lshl_b32 s46, s42, 1')
    p('s_add_u32 s46, s46, s48')
    p('s_lshl_b32 s47, s46, 4')
    p('s_add_u32 s47, s47, s41')
    p('s_lshl_b32 s47, s47, 11')
    p('s_lshl_b32 s55, s49, 10')
    p('s_add_u32 s47, s47, s55')
    p('s_lshl_b32 s46, s46, 5')
    p('s_lshl_b32 s55, s41, 1')
    p('s_add_u32 s46, s46, s55')
    p('s_add_u32 s46, s46, s49')
    p('s_lshl_b32 s46, s46, 7')
    p('v_and_b32 v5, 31, v1')
    p('s_lshl_b32 s55, s49, 4')
    p('v_xor_b32 v5, s55, v5')
    p('v_lshlrev_b32 v5, 2, v5')
    p(f'ds_write_b128 v3, {vr(KV+8,4)}')
    p(f'ds_write_b128 v3, {vr(KV+12,4)} offset:1024')
    p(f'buffer_store_dword v{Z}, v5, s[36:39], s46 offen')
    p.barrier()
    p(f'ds_read_b128 {vr(T,4)}, v4')
    p(f'ds_read_b128 {vr(T+4,4)}, v4 offset:1024')
    for n in range(8): p(f'v_add_f32 v{KV+n}, v{KV+n}, v{T+n}')
    for n in range(4): p(f'v_cvt_pk_bf16_f32 v{T+8+n}, v{KV+2*n}, v{KV+2*n+1}')
    p(f'buffer_store_dwordx4 {vr(T+8,4)}, v2, s[32:35], s47 offen')
    if stamp:
        p('s_waitcnt vmcnt(0)')
        st()
        p('s_memrealtime s[100:101]')
        p('s_waitcnt lgkmcnt(0)')
        p(f's_mov_b32 s{59+nst[0]}, s56')
        n = nst[0]
        p('s_sub_u32 s100, s100, s98')
        p('v_mov_b32 v10, 0')
        for q in range(n): p(f'v_writelane_b32 v10, s{60+q}, {q}')
        p(f'v_writelane_b32 v10, s100, 63')
        p(f'v_writelane_b32 v10, s97, 62')
        p(f'v_writelane_b32 v10, s96, 61')
        srd(p, 24, 18, 256)
        p('v_lshlrev_b32 v11, 2, v1')
        p('s_cmp_eq_u32 s2, 0')
        p('s_cbranch_scc0 a1_skipdbg')
        p('s_cmp_eq_u32 s40, 0')
        p('s_cbranch_scc0 a1_skipdbg')
        p('buffer_store_dword v10, v11, s[24:27], 0 offen')
        p.raw('a1_skipdbg:')
    p('s_endpgm')
```

```python
from fw import *
from genA import *

def emit_items(p, items):
    for f in items:
        if isinstance(f, tuple): p(f[0], tag=f[1])
        else: p(f)

def w64_dma_addr(p, vdst, rowstride, scolbytes):
    p('v_lshrrev_b32 v20, 3, v1')
    p('s_lshl_b32 s46, s40, 4')
    p('v_add_u32 v20, s46, v20')
    p(f's_mov_b32 s47, {rowstride}')
    p('v_mul_lo_u32 v20, v20, s47')
    p('v_bfe_u32 v21, v1, 2, 1')
    p('v_bfe_u32 v22, v1, 4, 1')
    p('v_xor_b32 v21, v21, v22')
    p('v_lshlrev_b32 v21, 6, v21')
    p('v_and_b32 v22, 3, v1')
    p('v_lshlrev_b32 v22, 4, v22')
    p('v_add3_u32 v20, v20, v21, v22')
    p(f'v_add_u32 v{vdst}, s{scolbytes}, v20')
    p(f'v_add_u32 v{vdst+1}, {8*rowstride-1024}, v{vdst}')

def w64_tr_addr(p, vdst, seg_expr_sgpr, base, hi_rows):
    p('v_lshrrev_b32 v20, 5, v1')
    p(f'v_mul_u32_u24 v20, {hi_rows}, v20')
    p('v_bfe_u32 v21, v1, 2, 2')
    p('v_add_u32 v20, v20, v21')
    p('v_lshlrev_b32 v20, 7, v20')
    p('v_bfe_u32 v21, v1, 3, 1')
    if seg_expr_sgpr is not None: p(f'v_xor_b32 v21, s{seg_expr_sgpr}, v21')
    p('v_lshlrev_b32 v21, 6, v21')
    p('v_bfe_u32 v22, v1, 4, 1')
    p('v_lshlrev_b32 v22, 5, v22')
    p('v_add3_u32 v20, v20, v21, v22')
    p('v_and_b32 v22, 3, v1')
    p('v_lshlrev_b32 v22, 3, v22')
    p(f'v_add3_u32 v{vdst}, v20, v22, {base}' if base <= 64 else f'v_add_u32 v20, v20, v22')
    if base > 64: p(f'v_add_u32 v{vdst}, {base}, v20')

def gen_A2(p, G=4, a=2):
    tile_ids(p, G, a)
    p('s_and_b32 s48, s40, 1')
    p('s_lshr_b32 s49, s40, 1')
    srd(p, 24, 4, 2048*2048)
    srd(p, 28, 6, 1024*6144)
    srd(p, 32, 20, 1 << 20, WS_KVP)
    srd(p, 36, 20, 128 << 10, WS_ZP)
    VX = 2; VW = 6; VA = 8; VT = 12; VL16 = 13; VZ = 14
    x_dma_addr(p, VX, 41)
    p('s_lshl_b32 s55, s42, 7')
    w64_dma_addr(p, VW, 6144, 55)
    p('s_lshl_b32 s50, s40, 12')
    p('s_lshl_b32 s51, s40, 11')
    p('s_add_u32 s51, s51, 49152')
    p('s_lshl_b32 s52, s43, 7')
    p('s_mul_i32 s54, s43, 393216')
    def dma(stage):
        it = [[], []]
        xb = stage % 3
        a = [f's_add_u32 m0, s50, {xb*16384}']
        for pp in range(4):
            a.append((f'buffer_load_dwordx4 v{VX+pp}, s[24:27], s52 offen' + (f' offset:{1024*pp}' if pp else '') + ' lds', f'x{stage}'))
        a += ['s_add_u32 s52, s52, 128', 's_and_b32 s52, s52, 0x7ff']
        b = [f's_add_u32 m0, s51, {(stage % 4)*8192}']
        b.append((f'buffer_load_dwordx4 v{VW}, s[28:31], s54 offen lds', f'w{stage}'))
        b.append((f'buffer_load_dwordx4 v{VW+1}, s[28:31], s54 offen offset:1024 lds', f'w{stage}'))
        b += ['s_add_u32 s54, s54, 393216', f's_cmp_eq_u32 s54, {16*393216}', 's_cselect_b32 s54, 0, s54']
        return a, b
    for st in range(3):
        a, b = dma(st)
        emit_items(p, b); emit_items(p, a)
    KP = 128
    ZL = 192
    p(f'v_lshlrev_b32 v{VL16}, 4, v1')
    p('s_lshl_b32 s46, s42, 1'); p('s_add_u32 s56, s46, s48')
    p('s_lshl_b32 s46, s56, 4'); p('s_lshl_b32 s47, s49, 3'); p('s_add_u32 s46, s46, s47')
    p('s_lshl_b32 s57, s46, 11')
    for n in range(16):
        if n and n % 4 == 0: p('s_add_u32 s57, s57, 4096')
        p(f'buffer_load_dwordx4 {vr(KP+4*n,4)}, v{VL16}, s[32:35], s57 offen' + (f' offset:{(n%4)*1024}' if n % 4 else ''), tag='kp')
    p(f'v_and_b32 v{VZ}, 31, v1'); p(f'v_lshlrev_b32 v{VZ}, 2, v{VZ}')
    p('v_lshrrev_b32 v20, 5, v1'); p('v_lshlrev_b32 v20, 10, v20')
    p(f'v_add_u32 v{VZ}, v{VZ}, v20')
    p('s_lshl_b32 s58, s56, 12')
    for n in range(16):
        u, j = n >> 3, n & 7
        p(f'buffer_load_dword v{ZL+n}, v{VZ}, s[36:39], s58 offen offset:{u*2048 + j*128}', tag='zp')
    x_lds_addr(p, VA, 49)
    w64_tr_addr(p, VT, 48, 49152, 8)
    ID = 208
    ONE = 216
    p('v_and_b32 v20, 31, v1'); p('v_lshrrev_b32 v21, 5, v1'); p('v_lshlrev_b32 v21, 2, v21')
    p('v_sub_u32 v20, v20, v21')
    p('v_mov_b32 v22, 0x3f80'); p('v_mov_b32 v23, 0x3f800000')
    for s in range(2):
        for jp in range(4):
            d0 = 16*s + ((2*jp) & 3) + 8*((2*jp) >> 2)
            r = ID + 4*s + jp
            p(f'v_cmp_eq_u32 vcc, {d0}, v20'); p(f'v_cndmask_b32 v{r}, 0, v22, vcc')
            p(f'v_cmp_eq_u32 vcc, {d0+1}, v20'); p(f'v_cndmask_b32 v{r}, v{r}, v23, vcc')
    for n in range(4): p(f'v_mov_b32 v{ONE+n}, 0x3f803f80')
    SET = [64, 88]
    ACC = [32, 48]
    KS = 112
    def frA(st, tt): return SET[st] + 4*tt
    def frB(st, tt, tb): return SET[st] + 8 + (tt*2 + tb)*4
    def reads(j):
        st = j & 1; i = j >> 1; hp = j & 1
        r = []
        for tt in range(2):
            t = 2*hp + tt
            base = (i % 4)*8192 + t*2048
            r.append(f'ds_read_b64_tr_b16 {vr(frA(st,tt),2)}, v{VT} offset:{base}')
            r.append(f'ds_read_b64_tr_b16 {vr(frA(st,tt)+2,2)}, v{VT} offset:{base+512}')
            for tb in range(2):
                r.append(f'ds_read_b128 {vr(frB(st,tt,tb),4)}, v{VA+t} offset:{(i%3)*16384 + tb*4096}')
        return r
    def mfmas(j):
        st = j & 1; m = []
        for tt in range(2):
            for tb in range(2):
                c = '0' if (j == 0 and tt == 0) else vr(ACC[tb],16)
                m.append(f'v_mfma_f32_32x32x16_bf16 {vr(ACC[tb],16)}, {vr(frA(st,tt),4)}, {vr(frB(st,tt,tb),4)}, {c}')
        return m
    p.stamp('issued')
    p.barrier(tags={'x0', 'w0'})
    p.stamp('first')
    for r in reads(0): p(r)
    KVA = 220
    ZD = 228
    ZB = 192
    ZA = 244
    XB = 16384
    for j in range(32):
        if j & 1:
            s = (j + 1) >> 1
            if s < 16: p.barrier(tags={f'x{s}', f'w{s}'}); p.stamp(f'b{j}')
        rd = reads(j+1) if j + 1 < 32 else []
        mf = mfmas(j)
        fill = [[] for _ in range(4)]
        for n, r in enumerate(rd): fill[min(2, n // 3)].append(r)
        if j & 1:
            s3 = (j - 1)//2 + 3
            if s3 < 16:
                a, b = dma(s3)
                fill[0] = [a[0]] + fill[0] + [a[1]]
                fill[1] += [a[2]]
                fill[2] += [a[3], a[4], b[0]]
                fill[3] += a[5:] + b[1:]
        extra = []
        if 8 <= j < 24:
            n = j - 8
            c = '0' if n == 0 else vr(KS,16)
            extra.append(f'v_mfma_f32_32x32x16_bf16 {vr(KS,16)}, {vr(ID+4*(n&1),4)}, {vr(KP+4*n,4)}, {c}')
        if j == 6:
            for n in range(8): fill[3].append(f'v_cvt_pk_bf16_f32 v{ZB+n}, v{ZL+2*n}, v{ZL+2*n+1}')
        if j == 7:
            extra.append(f'v_mfma_f32_32x32x16_bf16 {vr(ZD,16)}, {vr(ZB,4)}, {vr(ONE,4)}, 0')
            extra.append(f'v_mfma_f32_32x32x16_bf16 {vr(ZD,16)}, {vr(ZB+4,4)}, {vr(ONE,4)}, {vr(ZD,16)}')
        if j == 10:
            for n in range(8): fill[3].append(f'v_cvt_pk_bf16_f32 v{ZA+n}, v{ZD+2*n}, v{ZD+2*n+1}')
        if j == 28:
            fill[0].insert(0, f'v_lshlrev_b32 v20, 4, v1')
            fill[0].insert(1, f's_lshl_b32 s46, s40, 12')
            fill[0].insert(2, f's_add_u32 s46, s46, {XB}')
            fill[1].insert(0, f'v_add_u32 v21, s46, v20')
            fill[1].insert(1, f's_xor_b32 s46, s46, {2*4096}')
            fill[2].insert(0, f'v_add_u32 v22, s46, v20')
            for n in range(4): fill[3].append(f'ds_write_b128 v21, {vr(KS+4*n,4)} offset:{n*1024}')
        if j == 30:
            for n in range(4): fill[3].append(f'ds_read_b128 {vr(KP+4*n,4)}, v22 offset:{n*1024}')
        interleave(p, mf, fill)
        for e in extra: p(e)
    p.stamp('loopend')
    for n in range(16): p(f'v_add_f32 v{KS+n}, v{KS+n}, v{KP+n}')
    for n in range(8): p(f'v_cvt_pk_bf16_f32 v{KVA+n}, v{KS+2*n}, v{KS+2*n+1}')
    srd(p, 24, 20, 4 << 20, WS_OF)
    PQ = 64; NUM = 128; DEN = 160; T = 196
    for tb in range(2):
        a = ACC[tb]
        phi_block(p, list(range(a, a+16)), T)
        for n in range(8): p(f'v_cvt_pk_bf16_f32 v{PQ+tb*8+n}, v{a+2*n}, v{a+2*n+1}')
        for s in range(2):
            c = '0' if s == 0 else vr(DEN+16*tb,16)
            p(f'v_mfma_f32_32x32x16_bf16 {vr(DEN+16*tb,16)}, {vr(ZA+4*s,4)}, {vr(PQ+tb*8+4*s,4)}, {c}')
        for s in range(2):
            c = '0' if s == 0 else vr(NUM+16*tb,16)
            p(f'v_mfma_f32_32x32x16_bf16 {vr(NUM+16*tb,16)}, {vr(KVA+4*s,4)}, {vr(PQ+tb*8+4*s,4)}, {c}')
    p.stamp('phi')
    p('s_lshl_b32 s46, s41, 2'); p('s_lshl_b32 s47, s49, 1'); p('s_add_u32 s46, s46, s47')
    p('s_lshl_b32 s46, s46, 5'); p('s_add_u32 s46, s46, s56'); p('s_lshl_b32 s46, s46, 11')
    for tb in range(2):
        d = DEN + 16*tb; nn = NUM + 16*tb
        p(f'v_add_f32 v{d}, {EPS}, v{d}')
        p(f'v_rcp_f32 v{d}, v{d}')
        for n in range(16): p(f'v_mul_f32 v{nn+n}, v{nn+n}, v{d}')
        for n in range(8): p(f'v_cvt_pk_bf16_f32 v{nn+n}, v{nn+2*n}, v{nn+2*n+1}')
        if tb: p('s_add_u32 s46, s46, 65536')
        p(f'buffer_store_dwordx4 {vr(nn,4)}, v{VL16}, s[24:27], s46 offen')
        p(f'buffer_store_dwordx4 {vr(nn+4,4)}, v{VL16}, s[24:27], s46 offen offset:1024')
    p('s_endpgm')

def gen_A3(p, G=4, a=2, NPF=3):
    tile_ids(p, G, a)
    srd(p, 24, 20, 4 << 20, WS_OF)
    srd(p, 28, 8, 1024*2048)
    srd(p, 32, 16, 2048*4096)
    VW = 6; VT = 12; VL16 = 13
    p('s_lshl_b32 s55, s42, 7')
    w64_dma_addr(p, VW, 2048, 55)
    p(f'v_lshlrev_b32 v{VL16}, 4, v1')
    p('s_lshl_b32 s51, s40, 11')
    p('s_mul_i32 s54, s43, 131072')
    p('s_lshl_b32 s46, s41, 2'); p('s_add_u32 s56, s46, s40')
    p('s_lshl_b32 s56, s56, 16')
    p('s_lshl_b32 s52, s43, 12')
    NS = 8
    BF = 64
    NB = 4
    def wdma(stage):
        b = [f's_add_u32 m0, s51, {(stage % NS)*8192}']
        b.append((f'buffer_load_dwordx4 v{VW}, s[28:31], s54 offen lds', f'w{stage}'))
        b.append((f'buffer_load_dwordx4 v{VW+1}, s[28:31], s54 offen offset:1024 lds', f'w{stage}'))
        b += ['s_add_u32 s54, s54, 131072', f's_cmp_eq_u32 s54, {16*131072}', 's_cselect_b32 s54, 0, s54']
        return b
    def oload(stage):
        base = BF + (stage % NB)*16
        a = ['s_add_u32 s57, s56, s52']
        for f in range(4):
            a.append((f'buffer_load_dwordx4 {vr(base+4*f,4)}, v{VL16}, s[24:27], s57 offen' + (f' offset:{1024*f}' if f else ''), f'o{stage}'))
        a += ['s_add_u32 s52, s52, 4096', 's_and_b32 s52, s52, 0xffff']
        return a
    for st in range(3):
        emit_items(p, wdma(st)); emit_items(p, oload(st))
    w64_tr_addr(p, VT, None, 0, 4)
    p(f'v_xor_b32 v{VT+2}, 64, v{VT}')
    SET = [128, 160]
    ACC = [32, 48]
    def frA(st, tt, cb): return SET[st] + (tt*2 + cb)*4
    def reads(j):
        st = j & 1; i = j >> 1; hp = j & 1; r = []
        for tt in range(2):
            t = 2*hp + tt
            for cb in range(2):
                va = VT if cb == 0 else VT + 2
                base = (i % NS)*8192 + t*2048
                r.append(f'ds_read_b64_tr_b16 {vr(frA(st,tt,cb),2)}, v{va} offset:{base}')
                r.append(f'ds_read_b64_tr_b16 {vr(frA(st,tt,cb)+2,2)}, v{va} offset:{base+1024}')
        return r
    def mfmas(j):
        st = j & 1; i = j >> 1; hp = j & 1; m = []
        for tt in range(2):
            t = 2*hp + tt
            b = BF + (i % NB)*16 + 4*t
            for cb in range(2):
                c = '0' if (j == 0 and tt == 0) else vr(ACC[cb],16)
                m.append(f'v_mfma_f32_32x32x16_bf16 {vr(ACC[cb],16)}, {vr(frA(st,tt,cb),4)}, {vr(b,4)}, {c}')
        return m
    p.stamp('issued')
    p.barrier(tags={'w0'})
    p.stamp('first')
    for r in reads(0): p(r)
    for j in range(32):
        if j & 1:
            s = (j + 1) >> 1
            if s < 16: p.barrier(tags={f'w{s}'}); p.stamp(f'b{j}')
        rd = reads(j+1) if j + 1 < 32 else []
        fill = [[] for _ in range(4)]
        for n, r in enumerate(rd): fill[min(2, n // 3)].append(r)
        if j & 1:
            s3 = (j - 1)//2 + 3
            if s3 < 16:
                b = wdma(s3); a = oload(s3)
                fill[0] = [b[0]] + fill[0] + [b[1]]
                fill[1] += [b[2]] + b[3:] + [a[0]]
                fill[2] += [a[1], a[2]]
                fill[3] += a[3:]
        interleave(p, mfmas(j), fill)
    p.stamp('loopend')
    O = 128
    p('v_and_b32 v20, 31, v1')
    p('s_lshl_b32 s46, s41, 7'); p('s_lshl_b32 s47, s40, 5'); p('s_add_u32 s46, s46, s47')
    p('v_add_u32 v20, s46, v20')
    p('v_lshlrev_b32 v20, 12, v20')
    p('v_lshrrev_b32 v21, 5, v1'); p('v_lshlrev_b32 v21, 4, v21')
    p('v_add3_u32 v20, v20, v21, s55')
    for cb in range(2):
        a = ACC[cb]
        for gp in range(2):
            o = O + (cb*2 + gp)*4
            for g in range(2):
                r = a + 8*gp + 4*g
                p(f'v_cvt_pk_bf16_f32 v{o+2*g}, v{r}, v{r+1}')
                p(f'v_cvt_pk_bf16_f32 v{o+2*g+1}, v{r+2}, v{r+3}')
            p(f'v_permlane32_swap_b32 v{o}, v{o+2}')
            p(f'v_permlane32_swap_b32 v{o+1}, v{o+3}')
            p(f'buffer_store_dwordx4 {vr(o,4)}, v20, s[32:35], 0 offen offset:{cb*64 + gp*32}')
    p('s_endpgm')
```

```python
from fw import *
from genA import *
import struct, math
def f2h(x): return '0x%08x' % struct.unpack('<I', struct.pack('<f', x))[0]
def fl(x):
    inl = {0.0: '0', 0.5: '0.5', 1.0: '1.0', 2.0: '2.0', 4.0: '4.0', -0.5: '-0.5', -1.0: '-1.0', -2.0: '-2.0', -4.0: '-4.0'}
    return inl.get(x, f2h(x))
LP = 129*128
X12_BYTES = 256*LP
WP_BYTES = 513*8192
W_BYTES = 2048*1026
def KR(r): return (r & 3) + 8*(r >> 2)
def wave_ids(p):
    p('v_lshrrev_b32 v1, 6, v0')
    p('v_readfirstlane_b32 s40, v1')
    p('v_and_b32 v1, 63, v0')

def gen_angles(p, ANG, A1, A0, T):
    p(f'v_and_b32 v{T}, 31, v1')
    p(f'v_cvt_f32_u32 v{A1}, v{T}')
    p(f'v_mul_f32 v{A1}, {fl(1/32)}, v{A1}')
    p(f'v_lshrrev_b32 v{T}, 5, v1')
    p(f'v_cvt_f32_u32 v{T}, v{T}')
    p(f'v_mul_f32 v{T}, 4.0, v{T}')
    p(f'v_mul_f32 v{A0}, v{T}, v{A1}')
    for r in range(16):
        k = KR(r)
        if k == 0: p(f'v_mov_b32 v{ANG}, v{A0}')
        else: p(f'v_fmamk_f32 v{ANG+r}, v{A1}, {f2h(float(k))}, v{A0}')

def gen_F_split(p, F, ANG, T):
    for t in range(4):
        for j in range(4): p(f'v_cos_f32 v{T+j}, v{ANG+4*t+j}')
        for j in range(4): p(f'v_sin_f32 v{T+4+j}, v{ANG+4*t+j}')
        b = F + 6*t
        p(f'v_cvt_pk_bf16_f32 v{b+2}, v{T}, v{T+1}')
        p(f'v_cvt_pk_bf16_f32 v{b+3}, v{T+2}, v{T+3}')
        p(f'v_cvt_pk_bf16_f32 v{b}, -v{T+4}, -v{T+5}')
        p(f'v_cvt_pk_bf16_f32 v{b+1}, -v{T+6}, -v{T+7}')
        p(f'v_cvt_pk_bf16_f32 v{b+4}, v{T+4}, v{T+5}')
        p(f'v_cvt_pk_bf16_f32 v{b+5}, v{T+6}, v{T+7}')

def gen_F_int(p, FR, FI, ANG, T):
    for t in range(4):
        for j in range(4): p(f'v_cos_f32 v{T+j}, v{ANG+4*t+j}')
        for j in range(4): p(f'v_sin_f32 v{T+4+j}, v{ANG+4*t+j}')
        for j in range(4):
            p(f'v_cvt_pk_bf16_f32 v{FR+4*t+j}, v{T+j}, v{T+4+j}')
            p(f'v_cvt_pk_bf16_f32 v{FI+4*t+j}, -v{T+4+j}, v{T+j}')

def gen_TW(p, TC, TS, ANG, scale=None):
    for r in range(16): p(f'v_mul_f32 v{ANG+r}, {fl(1/32)}, v{ANG+r}')
    for r in range(16):
        p(f'v_cos_f32 v{TC+r}, v{ANG+r}')
        p(f'v_sin_f32 v{TS+r}, v{ANG+r}')
    if scale is not None:
        p(f's_mov_b32 s46, {f2h(scale)}')
        for r in range(0, 16, 2):
            p(f'v_pk_mul_f32 {vr(TC+r,2)}, {vr(TC+r,2)}, s[46:47] op_sel_hi:[1,0]')
            p(f'v_pk_mul_f32 {vr(TS+r,2)}, {vr(TS+r,2)}, s[46:47] op_sel_hi:[1,0]')

NEG0 = 'neg_lo:[1,0,0] neg_hi:[1,0,0]'
def twiddle(p, DR, DI, TC, TS, T):
    for r in range(0, 16, 2):
        t = T + (r & 2)*2 * 0
        a = T + 4*((r >> 1) & 1)
        p(f'v_pk_mul_f32 {vr(a,2)}, {vr(DR+r,2)}, {vr(TC+r,2)}')
        p(f'v_pk_mul_f32 {vr(a+2,2)}, {vr(DI+r,2)}, {vr(TC+r,2)}')
        p(f'v_pk_fma_f32 {vr(a,2)}, {vr(DI+r,2)}, {vr(TS+r,2)}, {vr(a,2)}')
        p(f'v_pk_fma_f32 {vr(DI+r,2)}, {vr(DR+r,2)}, {vr(TS+r,2)}, {vr(a+2,2)} {NEG0}')
        yield r, a

def gen_B1(p):
    wave_ids(p)
    XR = 0; WT = 16384; ST = 32768
    srd(p, 24, 10, 2048*2048)
    srd(p, 32, 20, X12_BYTES, WS_X1)
    srd(p, 36, 20, WP_BYTES, WS_WP)
    p('s_bitcmp1_b32 s40, 0')
    p('s_cselect_b32 s28, s14, s12'); p('s_cselect_b32 s29, s15, s13')
    p(f's_mov_b32 s30, {W_BYTES}'); p('s_mov_b32 s31, 0x00020000')
    p('s_lshr_b32 s41, s2, 5')
    p('s_and_b32 s42, s2, 31')
    p('s_lshl_b32 s43, s41, 2'); p('s_add_u32 s43, s43, s40'); p('s_lshl_b32 s43, s43, 5'); p('s_add_u32 s43, s43, s42')
    p('s_lshl_b32 s43, s43, 12')
    p('v_lshlrev_b32 v2, 4, v1')
    p('s_lshl_b32 m0, s40, 12')
    for k in range(4):
        p(f'buffer_load_dwordx4 v2, s[24:27], s43 offen' + (f' offset:{1024*k}' if k else '') + ' lds', tag='x')
    p('s_and_b32 s44, s2, 3')
    p('s_bfe_u32 s45, s2, 0x40002')
    p('s_lshr_b32 s46, s2, 6')
    p('s_lshl_b32 s47, s44, 3')
    p('s_lshl_b32 s48, s45, 6')
    p('s_add_u32 s47, s47, s48')
    p('s_lshr_b32 s48, s40, 1'); p('s_lshl_b32 s48, s48, 10')
    p('s_add_u32 s47, s47, s48')
    p('s_mul_i32 s47, s47, 1026')
    p('s_lshl_b32 s48, s46, 8')
    p('s_add_u32 s49, s47, s48')
    p('v_lshrrev_b32 v20, 4, v1')
    p('v_mul_u32_u24 v21, 1026, v20')
    p('v_and_b32 v22, 1, v20'); p('v_lshlrev_b32 v22, 2, v22')
    p('v_or_b32 v22, s40, v22')
    p('v_lshlrev_b32 v22, 1, v22')
    p('v_and_b32 v23, 15, v1')
    p('v_xor_b32 v22, v22, v23')
    p('v_lshlrev_b32 v22, 4, v22')
    p('v_add_u32 v3, v21, v22')
    p('s_lshl_b32 s50, s40, 12'); p(f's_add_u32 m0, s50, {WT}')
    for e in range(2):
        for cq in range(2):
            imm = e*2048 + cq*1024
            d = (32*e + 4*cq)*1026 - imm
            if d: p(f's_add_u32 s51, s49, {d}')
            p(f'buffer_load_dwordx4 v3, s[28:31], s{51 if d else 49} offen' + (f' offset:{imm}' if imm else '') + ' lds', tag='w')
    p('s_and_b32 s52, s45, 1'); p('s_lshr_b32 s53, s45, 2'); p('s_lshl_b32 s53, s53, 1'); p('s_add_u32 s52, s52, s53')
    p('s_lshl_b32 s52, s52, 10')
    p('s_bfe_u32 s53, s45, 0x10001'); p('s_lshl_b32 s53, s53, 9'); p('s_add_u32 s52, s52, s53')
    p('s_lshl_b32 s53, s44, 7'); p('s_add_u32 s52, s52, s53')
    p('v_and_b32 v20, 7, v1'); p('v_bfe_u32 v21, v1, 3, 1')
    p('v_lshlrev_b32 v22, 5, v21'); p('v_add_u32 v22, v22, v20'); p('v_mul_u32_u24 v22, 1026, v22'); p('v_add_u32 v4, 1024, v22')
    p('v_lshlrev_b32 v22, 4, v20'); p('v_lshlrev_b32 v23, 3, v21'); p('v_add_u32 v22, v22, v23')
    p('s_lshl_b32 s53, s40, 1'); p('v_add_u32 v5, s53, v22')
    p('s_cmp_eq_u32 s46, 3'); p('s_cselect_b32 s54, 0xffff, 0'); p('s_mov_b32 s55, 0')
    p('s_mov_b64 exec, s[54:55]')
    p('buffer_load_ushort v6, v4, s[28:31], s47 offen', tag='c512')
    p('s_mov_b64 exec, -1')
    F = 32; TC = 56; TS = 72; DATA = 88; DR = 104; DI = 120; ANG = 136; T = 152
    gen_angles(p, ANG, 20, 21, 22)
    gen_F_split(p, F, ANG, T)
    gen_TW(p, TC, TS, ANG)
    p(f's_add_u32 s53, s52, {512*8192}')
    p('s_mov_b64 exec, s[54:55]')
    p('buffer_store_short v6, v5, s[36:39], s53 offen', tag='c512s')
    p('s_mov_b64 exec, -1')
    p('v_lshrrev_b32 v20, 5, v1'); p('v_lshlrev_b32 v20, 2, v20')
    p('v_bfe_u32 v21, v1, 2, 2'); p('v_add_u32 v20, v20, v21'); p('v_lshlrev_b32 v20, 6, v20')
    p('v_bfe_u32 v21, v1, 4, 1'); p('v_lshlrev_b32 v21, 5, v21')
    p('v_and_b32 v22, 3, v1'); p('v_lshlrev_b32 v22, 3, v22')
    p('v_add3_u32 v20, v20, v21, v22')
    p('s_lshl_b32 s53, s40, 12'); p('v_add_u32 v7, s53, v20')
    p('v_lshrrev_b32 v20, 5, v1'); p(f'v_mul_u32_u24 v20, {4*33*16}, v20')
    p('v_and_b32 v21, 31, v1'); p('v_lshlrev_b32 v21, 4, v21')
    p('s_lshl_b32 s53, s40, 2'); p(f's_add_u32 s53, s53, {ST}')
    p('v_add3_u32 v8, v20, v21, s53')
    p.wait_dma({'x'})
    for t in range(4):
        p(f'ds_read_b64_tr_b16 {vr(DATA+4*t,2)}, v7 offset:{t*512}')
        p(f'ds_read_b64_tr_b16 {vr(DATA+4*t+2,2)}, v7 offset:{t*512+2048}')
    Fre = lambda t: vr(F+6*t+2, 4)
    Fim = lambda t: vr(F+6*t, 4)
    for t in range(4):
        p(f'v_mfma_f32_32x32x16_bf16 {vr(DR,16)}, {vr(DATA+4*t,4)}, {Fre(t)}, {"0" if t == 0 else vr(DR,16)}')
        p(f'v_mfma_f32_32x32x16_bf16 {vr(DI,16)}, {vr(DATA+4*t,4)}, {Fim(t)}, {"0" if t == 0 else vr(DI,16)}')
    p('v_and_b32 v20, 7, v0'); p('v_lshrrev_b32 v21, 3, v0')
    p('v_and_b32 v22, 3, v20')
    p('v_mul_u32_u24 v23, 33, v22'); p('v_add_u32 v23, v23, v21')
    p(f'v_sub_u32 v24, {31*33+32}, v23')
    p('v_cmp_eq_u32 vcc, 0, v21'); p('v_addc_co_u32 v24, vcc, 0, v24, vcc')
    p('v_cmp_lt_u32 vcc, 3, v20')
    p('v_cndmask_b32 v23, v23, v24, vcc')
    p('v_lshlrev_b32 v23, 4, v23'); p(f'v_add_u32 v9, {ST}, v23')
    p(f'v_mov_b32 v24, {4*33*16}'); p(f'v_mov_b32 v25, {-4*33*16 & 0xffffffff}')
    p('v_cndmask_b32 v10, v24, v25, vcc')
    p('v_mov_b32 v24, 0'); p('v_mov_b32 v25, 0x80000000')
    p('v_cndmask_b32 v11, v24, v25, vcc')
    p('v_cmp_eq_u32 vcc, 4, v0')
    p(f'v_mov_b32 v24, {ST}')
    p('v_cndmask_b32 v12, v9, v24, vcc')
    p('v_lshlrev_b32 v13, 4, v0')
    p(f's_mul_i32 s56, s2, {LP}')
    for r, a in twiddle(p, DR, DI, TC, TS, T):
        t = r >> 2; h = (r >> 1) & 1
        p(f'v_cvt_pk_bf16_f32 v{DATA+4*t+h}, v{a}, v{a+1}')
        p(f'v_cvt_pk_bf16_f32 v{DATA+4*t+2+h}, v{DI+r}, v{DI+r+1}')
    for t in range(4):
        p(f'v_mfma_f32_32x32x16_bf16 {vr(DR,16)}, {Fre(t)}, {vr(DATA+4*t,4)}, {"0" if t == 0 else vr(DR,16)}')
        p(f'v_mfma_f32_32x32x16_bf16 {vr(DI,16)}, {Fim(t)}, {vr(DATA+4*t,4)}, {"0" if t == 0 else vr(DI,16)}')
    p('v_bfe_u32 v20, v1, 2, 2')
    p('v_lshrrev_b32 v21, 4, v1')
    p('v_and_b32 v22, 1, v21'); p('v_lshlrev_b32 v22, 2, v22'); p('v_or_b32 v22, v22, v20')
    p('s_lshl_b32 s53, s40, 1'); p('v_xor_b32 v22, s53, v22'); p('v_lshlrev_b32 v22, 5, v22')
    p('v_lshlrev_b32 v20, 12, v20'); p('v_lshlrev_b32 v23, 8, v21'); p('v_add3_u32 v20, v20, v23, v22')
    p('v_and_b32 v23, 3, v1'); p('v_lshlrev_b32 v23, 3, v23')
    p(f'v_add_u32 v20, {WT}, v20'); p('v_add_u32 v14, v20, v23'); p('v_xor_b32 v15, 32, v14')
    p('v_and_b32 v20, 15, v1'); p('v_lshlrev_b32 v20, 13, v20'); p('v_lshlrev_b32 v21, 4, v21'); p('v_add_u32 v16, v20, v21')
    p('s_lshl_b32 s53, s46, 7'); p('s_lshl_b32 s57, s40, 5'); p('s_add_u32 s53, s53, s57'); p('s_lshl_b32 s53, s53, 13'); p('s_add_u32 s57, s53, s52')
    p(f's_add_u32 s58, s57, {16*8192}')
    for r in range(16):
        p(f'v_cvt_pk_bf16_f32 v{DATA+r}, v{DR+r}, v{DI+r}')
        p(f'ds_write_b32 v8, v{DATA+r} offset:{KR(r)*33*16}')
    p.barrier(tags={'w'})
    WR = 136
    for cbb in range(2):
        for cq in range(2):
            b = WR + (cbb*2 + cq)*4
            for e in range(2):
                p(f'ds_read_b64_tr_b16 {vr(b+2*e,2)}, v{14+cbb} offset:{e*2048 + cq*1024}')
    SR = 152
    for g in range(4):
        if g == 0: p(f'ds_read_b128 {vr(SR,4)}, v12')
        else:
            p(f'v_add_u32 v9, v9, v10')
            p(f'ds_read_b128 {vr(SR+4*g,4)}, v9')
    p(f'v_add_u32 v9, v9, v10')
    p(f'ds_read_b128 {vr(SR+16,4)}, v9')
    for cbb in range(2):
        for cq in range(2):
            b = WR + (cbb*2 + cq)*4
            p(f'buffer_store_dwordx4 {vr(b,4)}, v16, s[36:39], s{57+cbb} offen' + (f' offset:{cq*64}' if cq else ''))
    for g in range(5):
        for n in range(4): p(f'v_xor_b32 v{SR+4*g+n}, v11, v{SR+4*g+n}')
        if g == 4:
            p('s_mov_b64 exec, 0xff')
            p('s_cmp_eq_u32 s40, 0'); p('s_cselect_b32 s54, 0xff, 0'); p('s_mov_b32 s55, 0'); p('s_mov_b64 exec, s[54:55]')
        p(f'buffer_store_dwordx4 {vr(SR+4*g,4)}, v13, s[32:35], s56 offen')
        p('s_add_u32 s56, s56, 4096')
    p('s_endpgm')

NEG1 = 'neg_lo:[0,1,0] neg_hi:[0,1,0]'
def tw_ops(DR, DI, TC, TS, T, MID):
    o = []
    for r in range(0, 16, 2):
        a = T + 4*((r >> 1) & 1)
        o.append(f'v_pk_mul_f32 {vr(a,2)}, {vr(DR+r,2)}, {vr(TC+r,2)}')
        o.append(f'v_pk_mul_f32 {vr(a+2,2)}, {vr(DI+r,2)}, {vr(TC+r,2)}')
        o.append(f'v_pk_fma_f32 {vr(a,2)}, {vr(DI+r,2)}, {vr(TS+r,2)}, {vr(a,2)}')
        o.append(f'v_pk_fma_f32 {vr(a+2,2)}, {vr(DR+r,2)}, {vr(TS+r,2)}, {vr(a+2,2)} {NEG0}')
        o.append(f'v_cvt_pk_bf16_f32 v{MID+r}, v{a}, v{a+2}')
        o.append(f'v_cvt_pk_bf16_f32 v{MID+r+1}, v{a+1}, v{a+3}')
    return o
def st1(D, FR, FI, R, I_):
    m = []
    for t in range(4):
        m.append(f'v_mfma_f32_32x32x16_bf16 {vr(R,16)}, {vr(D+4*t,4)}, {vr(FR+4*t,4)}, {"0" if t == 0 else vr(R,16)}')
        m.append(f'v_mfma_f32_32x32x16_bf16 {vr(I_,16)}, {vr(D+4*t,4)}, {vr(FI+4*t,4)}, {"0" if t == 0 else vr(I_,16)}')
    return m
def st2(D, FR, FI, R, I_):
    m = []
    for t in range(4):
        m.append(f'v_mfma_f32_32x32x16_bf16 {vr(R,16)}, {vr(FR+4*t,4)}, {vr(D+4*t,4)}, {"0" if t == 0 else vr(R,16)}')
        m.append(f'v_mfma_f32_32x32x16_bf16 {vr(I_,16)}, {vr(FI+4*t,4)}, {vr(D+4*t,4)}, {"0" if t == 0 else vr(I_,16)}')
    return m
def spread(ops, n, skip=0):
    fill = [[] for _ in range(n)]
    k = n - skip
    per = (len(ops) + k - 1)//k
    for i, o in enumerate(ops): fill[skip + i//per].append(o)
    return fill
def fft2(p, DU, DV, FR, FI, TC, TS, UR, UI, VR, VI, T):
    for m in st1(DU, FR, FI, UR, UI): p(m)
    interleave(p, st1(DV, FR, FI, VR, VI), spread(tw_ops(UR, UI, TC, TS, T, DU), 8, 2))
    interleave(p, st2(DU, FR, FI, UR, UI), spread(tw_ops(VR, VI, TC, TS, T, DV), 8, 1))
    for m in st2(DV, FR, FI, VR, VI): p(m)

def gen_B2(p):
    wave_ids(p)
    XL = 0; ST = 32768
    srd(p, 24, 20, X12_BYTES, WS_X1)
    srd(p, 28, 20, WP_BYTES, WS_WP)
    srd(p, 32, 20, X12_BYTES, WS_X2)
    FR = 32; FI = 48; TC = 64; TS = 80; CT = 96; SN = 112; WP = 128; DU = 160; DV = 176; UR = 192; UI = 208; VR = 224; VI = 240
    p('v_lshrrev_b32 v20, 3, v1'); p(f'v_mul_u32_u24 v20, {LP}, v20')
    p('v_lshrrev_b32 v21, 4, v1'); p('v_and_b32 v22, 7, v1'); p('v_xor_b32 v21, v21, v22'); p('v_lshlrev_b32 v21, 4, v21')
    p('v_add_u32 v2, v20, v21'); p('v_xor_b32 v21, 64, v21'); p('v_add_u32 v3, v20, v21')
    p(f's_mul_i32 s41, s40, {64*LP}'); p('s_lshl_b32 s42, s2, 7'); p('s_add_u32 s41, s41, s42')
    p('s_lshl_b32 s43, s40, 13')
    for k in range(8):
        p(f's_add_u32 m0, s43, {k*1024}')
        p(f'buffer_load_dwordx4 v{2+(k&1)}, s[24:27], s41 offen lds', tag='x')
        if k < 7: p(f's_add_u32 s41, s41, {8*LP}')
    p('s_and_b32 s44, s2, 31'); p('s_lshr_b32 s45, s2, 5')
    p('s_lshl_b32 s46, s45, 2'); p('s_add_u32 s46, s46, s40'); p('s_lshl_b32 s46, s46, 5'); p('s_add_u32 s48, s46, s44')
    p('s_lshl_b32 s49, s48, 13')
    p('v_lshlrev_b32 v4, 4, v1')
    for m in range(8):
        if m == 4: p('s_add_u32 s49, s49, 4096')
        p(f'buffer_load_dwordx4 {vr(WP+4*m,4)}, v4, s[28:31], s49 offen' + (f' offset:{(m&3)*1024}' if m & 3 else ''), tag='wp')
    ANG = UR; T = 20
    gen_angles(p, ANG, 28, 29, 30)
    gen_F_int(p, FR, FI, ANG, T)
    gen_TW(p, TC, TS, ANG)
    p('v_and_b32 v20, 31, v1'); p('v_cvt_f32_u32 v20, v20'); p(f'v_mul_f32 v20, {fl(1/2048)}, v20')
    p('v_lshrrev_b32 v21, 5, v1'); p('v_cvt_f32_u32 v21, v21'); p(f'v_fmamk_f32 v20, v21, {f2h(1/16)}, v20')
    for r in range(16):
        k = KR(r)
        if k == 0: p(f'v_mov_b32 v{ANG}, v20')
        else: p(f'v_add_f32 v{ANG+r}, {fl(k/64)}, v20')
    for r in range(16):
        p(f'v_cos_f32 v{CT+r}, v{ANG+r}'); p(f'v_sin_f32 v{SN+r}, v{ANG+r}')
    p('v_lshlrev_b32 v20, 7, v1')
    p('v_bfe_u32 v21, v1, 1, 3'); p('v_xor_b32 v21, s40, v21'); p('v_lshlrev_b32 v21, 4, v21')
    p('v_add_u32 v5, v20, v21'); p('v_xor_b32 v6, 64, v5')
    p('v_mul_u32_u24 v20, 144, v1')
    p('s_lshl_b32 s50, s40, 2'); p(f's_add_u32 s50, s50, {ST}'); p('v_add_u32 v7, s50, v20')
    p('s_sub_u32 s51, 3, s40'); p('s_sub_u32 s52, 4, s40'); p('s_and_b32 s52, s52, 3')
    p('s_cmp_eq_u32 s44, 0'); p('s_cselect_b32 s51, s52, s51')
    p('s_lshl_b32 s51, s51, 2'); p(f's_add_u32 s51, s51, {ST+16}'); p('v_add_u32 v8, s51, v20')
    p('v_lshrrev_b32 v20, 3, v0'); p('v_and_b32 v21, 7, v0'); p('v_lshlrev_b32 v21, 4, v21')
    p('v_mul_u32_u24 v22, 144, v20'); p(f'v_add_u32 v22, {ST}, v22'); p('v_add_u32 v9, v22, v21')
    p(f'v_mul_u32_u24 v22, {LP}, v20'); p('v_add_u32 v10, v22, v21')
    p('s_lshl_b32 s53, s2, 7')
    p.stamp('tables')
    p.barrier(tags={'x'})
    p.stamp('xready')
    for t in range(4): p(f'ds_read_b128 {vr(DU+4*t,4)}, v5 offset:{t*8192}')
    for t in range(4): p(f'ds_read_b128 {vr(DV+4*t,4)}, v6 offset:{t*8192}')
    fft2(p, DU, DV, FR, FI, TC, TS, UR, UI, VR, VI, 20)
    p.stamp('fwd')
    P0, P1, P2, P3, Q0, Q1, R0, R1, R2, R3 = [12 + 2*n for n in range(10)]
    v2 = lambda x: vr(x, 2)
    N = lambda *a: 'neg_lo:[%s] neg_hi:[%s]' % (','.join(map(str, a)), ','.join(map(str, a)))
    p('s_mov_b32 s54, 0xffff0000')
    for m in range(8):
        r = 2*m; w = WP + 4*m
        p(f'v_lshlrev_b32 v{P0}, 16, v{w}'); p(f'v_lshlrev_b32 v{P0+1}, 16, v{w+2}')
        p(f'v_lshlrev_b32 v{P2}, 16, v{w+1}'); p(f'v_lshlrev_b32 v{P2+1}, 16, v{w+3}')
        p(f'v_and_b32 v{P1}, s54, v{w}'); p(f'v_and_b32 v{P1+1}, s54, v{w+2}')
        p(f'v_and_b32 v{P3}, s54, v{w+1}'); p(f'v_and_b32 v{P3+1}, s54, v{w+3}')
        p(f'v_pk_add_f32 {v2(Q0)}, {v2(P0)}, {v2(P2)}')
        p(f'v_pk_add_f32 {v2(Q1)}, {v2(P1)}, {v2(P3)}')
        p(f'v_pk_add_f32 {v2(P0)}, {v2(P0)}, {v2(P2)} {N(0,1)}')
        p(f'v_pk_add_f32 {v2(P1)}, {v2(P1)}, {v2(P3)} {N(0,1)}')
        p(f'v_pk_fma_f32 {v2(P2)}, {v2(P0)}, {v2(SN+r)}, {v2(Q0)} {N(1,0,0)}')
        p(f'v_pk_fma_f32 {v2(P3)}, {v2(P1)}, {v2(SN+r)}, {v2(Q1)} {N(1,0,0)}')
        p(f'v_pk_fma_f32 {v2(Q0)}, {v2(P0)}, {v2(SN+r)}, {v2(Q0)}')
        p(f'v_pk_fma_f32 {v2(Q1)}, {v2(P1)}, {v2(SN+r)}, {v2(Q1)}')
        p(f'v_pk_mul_f32 {v2(P0)}, {v2(P0)}, {v2(CT+r)}')
        p(f'v_pk_mul_f32 {v2(P1)}, {v2(P1)}, {v2(CT+r)}')
        ur, ui, vr_, vi = v2(UR+r), v2(UI+r), v2(VR+r), v2(VI+r)
        Ar, Ai, Cr, Ci, Br, Bi = v2(P2), v2(P3), v2(Q0), v2(Q1), v2(P0), v2(P1)
        p(f'v_pk_mul_f32 {v2(R0)}, {Ar}, {ur}'); p(f'v_pk_mul_f32 {v2(R1)}, {Ar}, {ui}')
        p(f'v_pk_mul_f32 {v2(R2)}, {Cr}, {vr_}'); p(f'v_pk_mul_f32 {v2(R3)}, {Cr}, {vi}')
        p(f'v_pk_fma_f32 {v2(R0)}, {Ai}, {ui}, {v2(R0)} {N(1,0,0)}'); p(f'v_pk_fma_f32 {v2(R1)}, {Ai}, {ur}, {v2(R1)}')
        p(f'v_pk_fma_f32 {v2(R2)}, {Ci}, {vi}, {v2(R2)} {N(1,0,0)}'); p(f'v_pk_fma_f32 {v2(R3)}, {Ci}, {vr_}, {v2(R3)}')
        p(f'v_pk_fma_f32 {v2(R0)}, {Br}, {vi}, {v2(R0)} {N(1,0,0)}'); p(f'v_pk_fma_f32 {v2(R1)}, {Br}, {vr_}, {v2(R1)}')
        p(f'v_pk_fma_f32 {v2(R2)}, {Br}, {ui}, {v2(R2)}'); p(f'v_pk_fma_f32 {v2(R3)}, {Br}, {ur}, {v2(R3)} {N(1,0,0)}')
        p(f'v_pk_fma_f32 {v2(R0)}, {Bi}, {vr_}, {v2(R0)} {N(1,0,0)}'); p(f'v_pk_fma_f32 {v2(R1)}, {Bi}, {vi}, {v2(R1)} {N(1,0,0)}')
        p(f'v_pk_fma_f32 {v2(R2)}, {Bi}, {ur}, {v2(R2)}'); p(f'v_pk_fma_f32 {v2(R3)}, {Bi}, {ui}, {v2(R3)}')
        p(f'v_cvt_pk_bf16_f32 v{DU+r}, v{R1}, v{R0}'); p(f'v_cvt_pk_bf16_f32 v{DU+r+1}, v{R1+1}, v{R0+1}')
        p(f'v_cvt_pk_bf16_f32 v{DV+r}, v{R3}, v{R2}'); p(f'v_cvt_pk_bf16_f32 v{DV+r+1}, v{R3+1}, v{R2+1}')
    p.stamp('point')
    fft2(p, DU, DV, FR, FI, TC, TS, UR, UI, VR, VI, 20)
    p.stamp('inv')
    p('s_and_b32 s55, s48, 511'); p('s_cmp_eq_u32 s55, 0')
    p('s_nop 7'); p('s_nop 7')
    p('s_cbranch_scc0 b2_noself')
    for r in range(0, 16, 2):
        p(f'v_pk_add_f32 {v2(UR+r)}, {v2(UR+r)}, {v2(VR+r)} {N(0,1)}')
        p(f'v_pk_add_f32 {v2(UI+r)}, {v2(UI+r)}, {v2(VI+r)}')
        p(f'v_pk_mul_f32 {v2(UR+r)}, {v2(UR+r)}, 0.5 op_sel_hi:[1,0]')
        p(f'v_pk_mul_f32 {v2(UI+r)}, {v2(UI+r)}, 0.5 op_sel_hi:[1,0]')
        p(f'v_pk_add_f32 {v2(VR+r)}, {v2(UR+r)}, 0 op_sel_hi:[1,0] {N(1,0)}')
        p(f'v_pk_add_f32 {v2(VI+r)}, {v2(UI+r)}, 0 op_sel_hi:[1,0]')
    p.raw('b2_noself:')
    p.reset()
    for r in range(16):
        p(f'v_cvt_pk_bf16_f32 v{DU+r}, v{UR+r}, v{UI+r}')
        p(f'v_cvt_pk_bf16_f32 v{DV+r}, -v{VR+r}, v{VI+r}')
        off = (r >> 2)*9216 + (r & 3)*32
        p(f'ds_write_b32 v7, v{DU+r} offset:{off}')
        p(f'ds_write_b32 v8, v{DV+r} offset:{off}')
    p.barrier()
    for g in range(8): p(f'ds_read_b128 {vr(UR+4*g,4)}, v9 offset:{g*4608}')
    for g in range(8):
        p(f'buffer_store_dwordx4 {vr(UR+4*g,4)}, v10, s[32:35], s53 offen')
        if g < 7: p(f's_add_u32 s53, s53, {32*LP}')
    p('s_endpgm')

def gen_B3(p):
    wave_ids(p)
    srd(p, 24, 20, X12_BYTES, WS_X2)
    srd(p, 32, 16, 2048*4096)
    FR = 32; FI = 48; TC = 64; TS = 80; D = 96; R = 112; I_ = 128; ANG = 144; FX = 160; T = 20
    p('v_lshrrev_b32 v20, 3, v1'); p('v_lshlrev_b32 v20, 7, v20')
    p('v_lshrrev_b32 v21, 4, v1'); p('v_and_b32 v22, 7, v1'); p('v_xor_b32 v21, v21, v22'); p('v_lshlrev_b32 v21, 4, v21')
    p('v_add_u32 v2, v20, v21'); p('v_xor_b32 v3, 64, v2')
    p(f's_mul_i32 s41, s2, {LP}'); p('s_lshl_b32 s42, s40, 12'); p('s_add_u32 s43, s41, s42')
    p('s_mov_b32 m0, s42')
    for k in range(4):
        p(f'buffer_load_dwordx4 v{2+(k&1)}, s[24:27], s43 offen' + (f' offset:{1024*k}' if k else '') + ' lds', tag='x')
    p('v_lshrrev_b32 v20, 5, v1'); p('v_lshlrev_b32 v20, 12, v20')
    p('s_lshl_b32 s44, s40, 5'); p(f's_add_u32 s44, s44, {128*128+16}')
    p('v_sub_u32 v4, s44, v20')
    p(f'v_add_u32 v5, {-64*128 & 0xffffffff}, v4')
    p(f'buffer_load_dword v{FX}, v4, s[24:27], s41 offen', tag='fx')
    p(f'buffer_load_dword v{FX+1}, v5, s[24:27], s41 offen', tag='fx')
    gen_angles(p, ANG, 28, 29, 30)
    gen_F_int(p, FR, FI, ANG, T)
    gen_TW(p, TC, TS, ANG, scale=2.0**-21)
    p('v_lshlrev_b32 v20, 7, v1')
    p('s_lshl_b32 s45, s40, 1')
    p('v_bfe_u32 v21, v1, 1, 3'); p('v_xor_b32 v21, s45, v21'); p('v_lshlrev_b32 v21, 4, v21')
    p('v_add_u32 v6, v20, v21')
    p('v_sub_u32 v20, 32, v1'); p('v_and_b32 v20, 31, v20')
    p('v_lshrrev_b32 v22, 5, v1'); p('v_xor_b32 v22, 1, v22'); p('v_lshlrev_b32 v22, 5, v22'); p('v_add_u32 v22, v22, v20')
    p('v_lshlrev_b32 v22, 7, v22')
    p('s_or_b32 s45, s45, 1'); p('v_bfe_u32 v21, v20, 1, 3'); p('v_xor_b32 v21, s45, v21'); p('v_lshlrev_b32 v21, 4, v21')
    p('v_add_u32 v7, v22, v21')
    p('s_lshr_b32 s46, s2, 5'); p('s_lshl_b32 s46, s46, 2'); p('s_add_u32 s46, s46, s40'); p('s_lshl_b32 s46, s46, 5')
    p('s_and_b32 s47, s2, 31'); p('s_add_u32 s46, s46, s47'); p('s_lshl_b32 s46, s46, 13'); p('s_add_u32 s46, s46, 2048')
    p('s_add_u32 s47, s46, 4096')
    p('v_and_b32 v20, 31, v1'); p('v_lshlrev_b32 v20, 6, v20'); p('v_lshrrev_b32 v21, 5, v1'); p('v_lshlrev_b32 v21, 4, v21'); p('v_add_u32 v8, v20, v21')
    p('v_and_b32 v20, 31, v1'); p('v_cmp_eq_u32 s[48:49], 0, v20')
    p.stamp('tables')
    p.barrier(tags={'x'})
    p.stamp('xready')
    p(f'ds_read_b128 {vr(D,4)}, v6'); p(f'ds_read_b128 {vr(D+4,4)}, v6 offset:8192')
    p(f'ds_read_b128 {vr(D+8,4)}, v7 offset:8192'); p(f'ds_read_b128 {vr(D+12,4)}, v7')
    p(f'v_cndmask_b32 v{D+8}, v{D+8}, v{FX}, s[48:49]')
    p(f'v_cndmask_b32 v{D+12}, v{D+12}, v{FX+1}, s[48:49]')
    for m in st1(D, FR, FI, R, I_): p(m)
    for o in tw_ops(R, I_, TC, TS, T, D): p(o)
    for t in range(4):
        p(f'v_mfma_f32_32x32x16_bf16 {vr(R,16)}, {vr(D+4*t,4)}, {vr(FR+4*t,4)}, {"0" if t == 0 else vr(R,16)}')
        p(f'v_mfma_f32_32x32x16_bf16 {vr(I_,16)}, {vr(D+4*t,4)}, {vr(FI+4*t,4)}, {"0" if t == 0 else vr(I_,16)}')
    O = 144
    for n, (a, so) in enumerate(((I_, 46), (R, 47))):
        for gp in range(2):
            o = O + (n*2 + gp)*4
            for g in range(2):
                r = a + 8*gp + 4*g
                p(f'v_cvt_pk_bf16_f32 v{o+2*g}, v{r}, v{r+1}')
                p(f'v_cvt_pk_bf16_f32 v{o+2*g+1}, v{r+2}, v{r+3}')
            p(f'v_permlane32_swap_b32 v{o}, v{o+2}')
            p(f'v_permlane32_swap_b32 v{o+1}, v{o+3}')
            p(f'buffer_store_dwordx4 {vr(o,4)}, v8, s[32:35], s{so} offen' + (f' offset:{gp*32}' if gp else ''))
    p('s_endpgm')
```

```python
import gen, genA, genA2, genB, functools, sys
P = functools.partial
NAME = "concat_heads__linear_attn_block__spectral_gfnet__prompt"
HEAD = "\n".join(l[2:] if l.startswith('; ') else l[1:] for l in open('cdna_kernels/%s.s.ref' % NAME).read().split('\n') if l.startswith(';') and '@launch' not in l and 'Override launch' not in l and 'default: block' not in l and 'grid=ceil' not in l)
def roles(g1=4, a1=2, g2=4, a2=2, g3=4, a3=2):
    return [('l1_kernel', [(256, P(genA.gen_A1, G=g1, a=a1)), (256, genB.gen_B1)]),
            ('l2_kernel', [(256, P(genA2.gen_A2, G=g2, a=a2)), (129, genB.gen_B2)]),
            ('l3_kernel', [(256, P(genA2.gen_A3, G=g3, a=a3)), (256, genB.gen_B3)])]
if __name__ == '__main__':
    gen.build(roles(), 'all.s', head=HEAD)
    gen.build(roles(), 'all_s0.s', stamp={})
    gen.build(roles(), 'all_s1.s', stamp={'l1_kernel': 1, 'l2_kernel': 1, 'l3_kernel': 1})
```

```python
import gen, genB, mk_all
def nop(p): p('s_endpgm')
R = mk_all.roles()
gen.build(R, '../cdna_kernels/x0.s', head=mk_all.HEAD)
gen.build(R + [('n1_kernel', [(1, nop)])], '../cdna_kernels/x1.s', head=mk_all.HEAD)
gen.build(R + [('n1_kernel', [(1, nop)]), ('n2_kernel', [(1, nop)]), ('n3_kernel', [(1, nop)])], '../cdna_kernels/x3.s', head=mk_all.HEAD)
gen.build([('n1_kernel', [(1, nop)]), ('n2_kernel', [(1, nop)]), ('n3_kernel', [(1, nop)])] + R, '../cdna_kernels/x3f.s', head=mk_all.HEAD)
```

```python
import re

REG = re.compile(r'^(-|\|)?(abs\()?([vsa])(\d+|\[(\d+):(\d+)\])\)?\|?$')

def regs_of(tok):
    tok = tok.strip()
    if tok in ('vcc',): return [('s', 'vcc')]
    if tok in ('exec',): return [('s', 'exec')]
    if tok == 'm0': return [('s', 'm0')]
    if tok == 'scc': return []
    m = REG.match(tok)
    if not m: return []
    kind = m.group(3)
    if m.group(5) is not None:
        return [(kind, i) for i in range(int(m.group(5)), int(m.group(6)) + 1)]
    return [(kind, int(m.group(4)))]

TRANS = ('v_exp_f32', 'v_log_f32', 'v_rcp_f32', 'v_rsq_f32', 'v_sqrt_f32', 'v_sin_f32', 'v_cos_f32', 'v_rcp_iflag_f32')

class I:
    __slots__ = ('text', 'op', 'ops', 'dst', 'src', 'kind', 'tag', 'need', 'mods')
    def __init__(self, text, tag=None, need=None):
        self.text = text; self.tag = tag; self.need = need
        t = text.split(';')[0].strip()
        self.dst = []; self.src = []; self.kind = 'other'; self.mods = ''
        if t.endswith(':'):
            self.op = 'label'; self.kind = 'label'; self.ops = []; return
        parts = t.split(None, 1)
        self.op = op = parts[0]
        rest = parts[1] if len(parts) > 1 else ''
        raw = [x.strip() for x in rest.split(',')] if rest else []
        ops = []
        mods = []
        for x in raw:
            w = x.split()
            if w:
                ops.append(w[0]); mods += w[1:]
        self.ops = ops; self.mods = ' '.join(mods)
        R = lambda i: regs_of(ops[i]) if i < len(ops) else []
        allr = lambda a: sum((R(i) for i in range(a, len(ops))), [])
        if op.startswith('v_mfma'):
            self.kind = 'mfma'; self.dst = R(0); self.src = allr(1)
        elif op.startswith('v_'):
            self.kind = 'trans' if op.replace('_e32', '').replace('_e64', '') in TRANS else 'valu'
            base = op
            if base.startswith('v_cmp'):
                self.dst = R(0); self.src = allr(1)
            elif base.startswith('v_permlane'):
                self.dst = R(0) + R(1); self.src = R(0) + R(1); self.kind = 'permlane'
            elif base.startswith(('v_add_co', 'v_sub_co', 'v_addc_co', 'v_subb_co')):
                self.dst = R(0) + R(1); self.src = allr(2)
            elif base.startswith(('v_fmac', 'v_mac', 'v_dot2c')):
                self.dst = R(0); self.src = allr(0)
            elif base.startswith('v_readfirstlane') or base.startswith('v_readlane'):
                self.dst = R(0); self.src = allr(1); self.kind = 'readlane'
            elif base.startswith('v_writelane'):
                self.dst = R(0); self.src = allr(0)
            else:
                self.dst = R(0); self.src = allr(1)
                if base.startswith('v_cndmask') and len(ops) == 3: self.src += [('s', 'vcc')]
            if op.startswith('v_dot'): self.kind = 'dot'
            if 'dpp' in self.mods or 'row_' in self.mods or 'quad_perm' in self.mods: self.kind = 'dpp'
        elif op.startswith('ds_'):
            if op.startswith(('ds_read', 'ds_bpermute', 'ds_permute', 'ds_swizzle')):
                self.kind = 'dsread'; self.dst = R(0); self.src = allr(1)
            else:
                self.kind = 'dswrite'; self.src = allr(0)
        elif op.startswith(('buffer_load', 'global_load')):
            if 'lds' in self.mods.split() or op.startswith('global_load_lds'):
                self.kind = 'dma'; self.src = allr(0) + [('s', 'm0')]
            else:
                self.kind = 'vload'; self.dst = R(0); self.src = allr(1)
        elif op.startswith(('buffer_store', 'global_store')):
            self.kind = 'vstore'; self.src = allr(0)
        elif op.startswith(('buffer_atomic', 'global_atomic')):
            self.kind = 'vatomic'; self.src = allr(0)
            if 'sc0' in self.mods.split(): self.dst = R(0)
        elif op.startswith('s_load') or op in ('s_memtime', 's_memrealtime'):
            self.kind = 'smem'; self.dst = R(0); self.src = allr(1)
        elif op == 's_waitcnt':
            self.kind = 'wait'
        elif op == 's_barrier':
            self.kind = 'barrier'
        elif op == 's_nop':
            self.kind = 'nop'
        elif op.startswith(('s_cbranch', 's_branch', 's_endpgm', 's_setpc', 's_swappc')):
            self.kind = 'branch'
        elif op.startswith('s_'):
            self.kind = 'salu'
            if op.startswith('s_cmp') or op.startswith('s_bitcmp'):
                self.src = allr(0)
            elif op in ('s_setprio', 's_sleep'):
                pass
            else:
                self.dst = R(0); self.src = allr(1)
                if op.startswith(('s_addk', 's_mulk')): self.src += R(0)
                if 'saveexec' in op: self.dst += [('s', 'exec')]; self.src += [('s', 'exec')]
    def ws(self):
        if self.kind == 'nop': return int(self.ops[0], 0) + 1
        if self.kind in ('label',): return 0
        return 1

VALUK = ('valu', 'trans', 'permlane', 'readlane', 'dot', 'dpp')
VMK = ('dma', 'vload', 'vstore', 'vatomic')

class Prog:
    def __init__(self):
        self.ins = []
        self._lbl = 0
    def __call__(self, s, tag=None, need=None):
        for l in s.split('\n'):
            l = l.strip()
            if not l or l.startswith(';') or l.startswith('#'): continue
            self.ins.append(I(l, tag, need))
    def wait_dma(self, tags):
        i = I('s_nop 0'); i.kind = 'waittag'; i.need = set(tags) if not isinstance(tags, str) else {tags}
        self.ins.append(i)
    def barrier(self, tags=None):
        if tags is not None: self.wait_dma(tags)
        self('s_barrier')
    def stamp(self, name=''): pass
    def reset(self):
        i = I('s_nop 0'); i.kind = 'reset'; self.ins.append(i)
    def fake_vm(self, tag=None):
        i = I('s_nop 0', tag); i.kind = 'fakevm'; self.ins.append(i)
    def raw(self, s):
        i = I('s_nop 0'); i.kind = 'raw'; i.text = s; self.ins.append(i)

    def finalize(self, verbose=False):
        out = []
        vmq = []
        lgq = []
        smem_pending = False
        hist = []
        nops_inserted = 0
        def emit(i):
            out.append(i)
            hist.append(i)
            if len(hist) > 40: del hist[0]
        def need_ws(i):
            need = 0
            dist = 0
            S = set(i.src); D = set(i.dst)
            vS = {r for r in S if r[0] in 'va'}; vD = {r for r in D if r[0] in 'va'}
            for p in reversed(hist):
                req = 0
                pD = set(p.dst); pS = set(p.src)
                pvD = {r for r in pD if r[0] in 'va'}
                psD = {r for r in pD if r[0] == 's'}
                if p.kind == 'mfma':
                    if i.kind == 'mfma':
                        a = set(regs_of(i.ops[1])) | set(regs_of(i.ops[2])); c = set(regs_of(i.ops[3]))
                        if pvD & a: req = max(req, 12)
                        if pvD & c and not (c == pvD): req = max(req, 10)
                        if pvD & vD and not (vD == pvD): req = max(req, 12)
                    else:
                        if i.kind in VALUK:
                            if pvD & (vS | vD): req = max(req, 12)
                            pc = set(regs_of(p.ops[3]))
                            if pc & vD: req = max(req, 7)
                        elif i.kind in VMK or i.kind in ('dsread', 'dswrite'):
                            if pvD & (vS | vD): req = max(req, 12)
                            pc = set(regs_of(p.ops[3]))
                            if pc & vD: req = max(req, 7)
                elif p.kind in VALUK:
                    if i.kind == 'mfma' and pvD & vS: req = max(req, 2)
                    if i.kind == 'readlane' and pvD & vS: req = max(req, 1)
                    if i.kind == 'permlane' and pvD & (vS | vD): req = max(req, 2)
                    if i.kind == 'dpp' and pvD & vS: req = max(req, 2)
                    if p.kind == 'trans' and i.kind in VALUK + ('mfma',) and pvD & (vS | vD): req = max(req, 2 if i.kind == 'mfma' else 1)
                    if p.kind == 'trans' and (i.kind in VMK or i.kind.startswith('ds')) and pvD & vS: req = max(req, 1)
                    if p.kind == 'dot' and pvD & (vS | vD) and p.op != i.op: req = max(req, 3)
                    if p.kind == 'dot' and p.op == i.op and pvD & set(sum((regs_of(o) for o in i.ops[1:3]), [])): req = max(req, 3)
                    if psD:
                        if i.kind in VMK and psD & S: req = max(req, 5)
                        if i.kind in VALUK and psD & S: req = max(req, 4 if i.kind == 'readlane' else 2)
                        if i.kind == 'mfma' and ('s', 'exec') in psD: req = max(req, 4)
                        if i.kind == 'salu' and psD & S: req = max(req, 1)
                elif p.kind == 'salu':
                    if ('s', 'm0') in pD and i.kind == 'dma': req = max(req, 1)
                elif p.kind in ('vstore', 'vatomic'):
                    if ('x4' in p.op or 'x3' in p.op) and (vD & set(regs_of(p.ops[0]))):
                        req = max(req, 2)
                elif p.kind == 'dswrite':
                    pass
                if req > dist: need = max(need, req - dist)
                dist += p.ws()
                if dist >= 20: break
            return need
        def sure(lst): return sum(1 for e in lst if not (isinstance(e[0], str) and e[0].startswith('?')))
        def mkwait(vm=None, lg=None):
            s = 's_waitcnt'
            if vm is not None: s += f' vmcnt({vm})'
            if lg is not None: s += f' lgkmcnt({lg})'
            return I(s)
        for i in self.ins:
            if i.kind == 'reset':
                vmq.clear(); lgq.clear(); hist.clear(); continue
            if i.kind == 'raw':
                out.append(i); continue
            if i.kind == 'fakevm':
                vmq.append((i.tag, [])); continue
            if i.kind == 'waittag':
                idx = -1
                for n, e in enumerate(vmq):
                    if e[0] in i.need: idx = n
                if idx >= 0:
                    left = sure(vmq[idx + 1:])
                    assert left <= 63, left
                    emit(mkwait(vm=left)); del vmq[:idx + 1]
                continue
            if i.kind == 'label':
                if vmq or lgq:
                    emit(mkwait(vm=0 if vmq else None, lg=0 if lgq else None)); vmq.clear(); lgq.clear()
                emit(i); continue
            if i.kind == 'wait':
                m = re.search(r'vmcnt\((\d+)\)', i.text)
                if m:
                    n = int(m.group(1))
                    if len(vmq) > n: del vmq[:len(vmq) - n]
                m = re.search(r'lgkmcnt\((\d+)\)', i.text)
                if m:
                    n = int(m.group(1))
                    if n == 0: lgq.clear()
                    elif not any(e[0] == 'smem' for e in lgq) and len(lgq) > n: del lgq[:len(lgq) - n]
                emit(i); continue
            use = set(i.src) | set(i.dst)
            vmw = None; lgw = None; vmi = None
            for n, e in enumerate(vmq):
                if set(e[1]) & use: vmw = sure(vmq[n + 1:]); vmi = n
            for n, e in enumerate(lgq):
                if set(e[1]) & use: lgw = len(lgq) - n - 1
            if i.kind == 'barrier' and lgq: lgw = 0
            if i.kind == 'branch' and i.op == 's_endpgm': pass
            if lgw is not None and any(e[0] == 'smem' for e in lgq): lgw = 0
            if vmw is not None or lgw is not None:
                if vmw is not None: assert vmw <= 63
                if lgw is not None and lgw > 15: lgw = 15
                emit(mkwait(vmw, lgw))
                if vmw is not None: del vmq[:vmi + 1]
                if lgw is not None:
                    if lgw == 0: lgq.clear()
                    else: del lgq[:len(lgq) - lgw]
            n = need_ws(i)
            while n > 0:
                k = min(n, 16)
                emit(I(f's_nop {k-1}')); nops_inserted += 1; n -= k
            emit(i)
            if i.kind in VMK:
                vmq.append((i.tag, i.dst))
                if len(vmq) > 63:
                    raise Exception('vmcnt overflow >63 at ' + i.text)
            elif i.kind in ('dsread', 'dswrite'):
                lgq.append((i.kind, i.dst))
            elif i.kind == 'smem':
                lgq.append(('smem', i.dst))
            if i.kind == 'branch' and i.op in ('s_branch', 's_endpgm'):
                vmq.clear(); lgq.clear(); hist.clear()
        lines = []
        for i in out:
            t = i.text
            lines.append(t if (i.kind == 'label' or t.endswith(':')) else '  ' + t)
        if verbose: print('instrs', len(out), 'nops', nops_inserted)
        return lines

class Module:
    def __init__(self):
        self.head = []; self.body = []; self.desc = []; self.rodata = []
    def launch(self, kname, grid, block=256, lds=0):
        self.head.append(f"; @launch kernel={kname} grid=({grid},1,1) block=({block},1,1) lds={lds}")
    def add_kernel(self, kname, prog, vgpr=256, sgpr=102, accum=None, verbose=False):
        if accum is None: accum = (vgpr + 3) // 4 * 4
        self.body += [f".globl {kname}", ".p2align 8", f".type {kname},@function", f"{kname}:"]
        self.body += prog.finalize(verbose)
        self.desc += [".p2align 6", f".amdhsa_kernel {kname}", f"  .amdhsa_next_free_vgpr {vgpr}", f"  .amdhsa_next_free_sgpr {sgpr}",
                      f"  .amdhsa_accum_offset {accum}", "  .amdhsa_group_segment_fixed_size 0", "  .amdhsa_kernarg_size 72",
                      "  .amdhsa_user_sgpr_count 2", "  .amdhsa_user_sgpr_kernarg_segment_ptr 1", "  .amdhsa_system_sgpr_workgroup_id_x 1", ".end_amdhsa_kernel"]
    def text(self, comment_head=""):
        out = []
        if comment_head: out += ["; " + l for l in comment_head.split("\n")]
        out += self.head
        out += ['.amdgcn_target "amdgcn-amd-amdhsa--gfx950"', ".text"]
        out += self.body
        out += ['.section .rodata,"a"'] + self.desc + self.rodata
        return "\n".join(out) + "\n"
```

```python
from fw import *
from genA import *
from genA2 import emit_items, w64_dma_addr, w64_tr_addr
import genB
from genB import fl, f2h, KR, LP, X12_BYTES, WP_BYTES, W_BYTES
NAME = "concat_heads__linear_attn_block__spectral_gfnet__prompt"
WS_FL = 24 << 20
FL_K, FL_O, FL_1, FL_2, FL_BYTES = 0, 4096, 8192, 12288, 16384
WS_ST = 28 << 20
SC = ' sc1'
SCO = ' sc1'
SPIN = 40000
FLS = 60
DBS = 64

class Ctx:
    def __init__(self, p, stamp): self.p = p; self.on = stamp; self.n = 0; self.names = []; self.lab = 0
    def stamp(self, name):
        if not self.on: return
        p = self.p
        assert self.n < 26
        if self.n > 0: p(f's_mov_b32 s{69+self.n}, s96')
        p('s_memrealtime s[96:97]')
        self.names.append(name); self.n += 1
    def label(self, s):
        self.lab += 1
        return f'{s}_{self.lab}'
    def finish(self):
        p = self.p
        if self.on:
            p('s_waitcnt vmcnt(0) lgkmcnt(0)')
            self.stamp('end')
            p(f's_mov_b32 s{69+self.n}, s96')
            p('v_mov_b32 v10, 0')
            for q in range(self.n): p(f'v_writelane_b32 v10, s{70+q}, {q}')
            srd(p, 24, 20, 512*256, WS_ST)
            p('v_and_b32 v11, 63, v0'); p('v_lshlrev_b32 v11, 2, v11')
            p('s_lshl_b32 s46, s68, 8')
            lab = self.label('nost')
            p('s_cmp_eq_u32 s40, 0')
            p(f's_cbranch_scc0 {lab}')
            p('buffer_store_dword v10, v11, s[24:27], s46 offen')
            p.raw(f'{lab}:'); p.reset()
        p('s_endpgm')

def spin(c, loads, check, vP):
    p = c.p
    ok = c.label('ok'); lp = c.label('spin')
    for s in check: p(s)
    p(f's_cbranch_vccz {ok}')
    p(f's_mov_b32 s59, {SPIN}')
    p.raw(f'{lp}:')
    p.raw('s_sleep 1')
    for s in loads: p.raw(s)
    p.raw('s_waitcnt vmcnt(0)')
    for s in check: p.raw(s)
    p.raw(f's_cbranch_vccz {ok}')
    p.raw('s_sub_u32 s59, s59, 1')
    p.raw('s_cmp_lg_u32 s59, 0')
    p.raw(f's_cbranch_scc1 {lp}')
    p.raw(f'{ok}:')

def wave0_begin(c):
    p = c.p
    lab = c.label('w0')
    p('s_cmp_eq_u32 s40, 0')
    p(f's_cbranch_scc0 {lab}')
    return lab
def wave0_end(c, lab):
    c.p('s_waitcnt vmcnt(0) lgkmcnt(0)') if False else None
    c.p.raw(f'{lab}:')

def sync_wave0(c, body, tmp):
    p = c.p
    lab = c.label('w0')
    p('s_cmp_eq_u32 s40, 0')
    p(f's_cbranch_scc0 {lab}')
    body()
    p.raw(f'{lab}:')

def raw_spin(c, loads, check):
    p = c.p
    ok = c.label('ok'); lp = c.label('spin')
    p.raw(f's_mov_b32 s59, {SPIN}')
    p.raw(f'{lp}:')
    for s in loads: p.raw(s)
    p.raw('s_waitcnt vmcnt(0)')
    for s in check: p.raw(s)
    p.raw(f's_cbranch_vccz {ok}')
    p.raw('s_sleep 1')
    p.raw('s_sub_u32 s59, s59, 1')
    p.raw('s_cmp_lg_u32 s59, 0')
    p.raw(f's_cbranch_scc1 {lp}')
    p.raw(f'{ok}:')

def cleared_check(c, vC, vZ):
    p = c.p
    ok = c.label('ok'); lp = c.label('spin')
    p.raw(f'v_cmp_eq_u32 vcc, 0, v{vC}')
    p.raw(f's_cbranch_vccz {ok}')
    p.raw(f's_mov_b32 s59, {SPIN}')
    p.raw(f'{lp}:')
    p.raw('s_sleep 1')
    p.raw(f'buffer_load_dword v{vC}, v{vZ}, s[{DBS}:{DBS+3}], 0 offen{SC}')
    p.raw('s_waitcnt vmcnt(0)')
    p.raw(f'v_cmp_eq_u32 vcc, 0, v{vC}')
    p.raw(f's_cbranch_vccz {ok}')
    p.raw('s_sub_u32 s59, s59, 1')
    p.raw('s_cmp_lg_u32 s59, 0')
    p.raw(f's_cbranch_scc1 {lp}')
    p.raw(f'{ok}:')

def flag_store(c, vOne, vZ, soff):
    p = c.p
    p.raw('s_mov_b64 exec, 1')
    p.raw(f'buffer_store_dword v{vOne}, v{vZ}, s[{FLS}:{FLS+3}], s{soff} offen{SC}')
    p.raw('s_mov_b64 exec, -1')

def gen_A(c, G=4, a=2, NB=8):
    p = c.p
    tile_ids(p, G, a)
    p('s_and_b32 s48, s40, 1')
    p('s_lshr_b32 s49, s40, 1')
    srd(p, 24, 4, 2048*2048)
    srd(p, 28, 6, 1024*6144)
    srd(p, 32, 20, 1 << 20, WS_KVP)
    srd(p, 36, 20, 128 << 10, WS_ZP)
    srd(p, FLS, 20, FL_BYTES, WS_FL)
    srd(p, DBS, 18, 256)
    VX = 2; VW = 6; VA = 8; VBK = 12; VBV = 13; VT = 14; VL16 = 15; VW2 = 16; VZ = 18; VP_ = 19
    x_dma_addr(p, VX, 41)
    p('v_lshrrev_b32 v20, 4, v1')
    p('s_lshl_b32 s46, s40, 3')
    p('v_add_u32 v21, s46, v20')
    p('s_mov_b32 s47, 6144')
    p('v_mul_lo_u32 v21, v21, s47')
    p('v_bfe_u32 v22, v1, 2, 2')
    p('v_xor_b32 v22, v22, v20')
    p('v_and_b32 v23, 1, v22')
    p('v_lshlrev_b32 v23, 6, v23')
    p('v_lshrrev_b32 v22, 1, v22')
    p('v_lshlrev_b32 v22, 11, v22')
    p('v_add3_u32 v21, v21, v22, v23')
    p('v_and_b32 v22, 3, v1')
    p('v_lshlrev_b32 v22, 4, v22')
    p('s_lshl_b32 s55, s42, 7')
    p('s_add_u32 s46, s55, 2048')
    p(f'v_add3_u32 v{VW}, v21, v22, s46')
    p(f'v_add_u32 v{VW+1}, {4*6144-1024}, v{VW}')
    p('s_lshl_b32 s50, s40, 12')
    p('s_lshl_b32 s51, s40, 11')
    p('s_add_u32 s51, s51, 49152')
    p('s_lshl_b32 s52, s43, 7')
    p('s_lshl_b32 s53, s43, 1')
    p('s_mul_i32 s54, s53, 196608')

    def xdma(stage, half):
        buf = stage % 3
        it = [f's_add_u32 m0, s50, {buf*16384}']
        for pp in (2*half, 2*half+1):
            it.append((f'buffer_load_dwordx4 v{VX+pp}, s[24:27], s52 offen' + (f' offset:{1024*pp}' if pp else '') + ' lds', f'x{stage}'))
        if half == 1:
            it += ['s_add_u32 s52, s52, 128', 's_and_b32 s52, s52, 0x7ff']
        return it
    def wdma(j):
        slot = j % 4
        it = [f's_add_u32 m0, s51, {slot*8192}']
        if j < 32:
            it.append((f'buffer_load_dwordx4 v{VW}, s[28:31], s54 offen lds', f'w{j}'))
            it.append((f'buffer_load_dwordx4 v{VW+1}, s[28:31], s54 offen offset:1024 lds', f'w{j}'))
            it += ['s_add_u32 s53, s53, 1', 's_and_b32 s53, s53, 31', 's_mul_i32 s54, s53, 196608']
        else:
            st = j - 32
            it.append((f'buffer_load_dwordx4 v{VW2}, s[28:31], s54 offen lds', f'q{st}'))
            it.append((f'buffer_load_dwordx4 v{VW2+1}, s[28:31], s54 offen offset:1024 lds', f'q{st}'))
            it += ['s_add_u32 s54, s54, 393216', f's_cmp_eq_u32 s54, {16*393216}', 's_cselect_b32 s54, 0, s54']
        return it
    emit_items(p, xdma(0, 0))
    emit_items(p, wdma(0)); emit_items(p, xdma(0, 1))
    emit_items(p, wdma(1)); emit_items(p, xdma(1, 0))
    emit_items(p, wdma(2)); emit_items(p, xdma(1, 1))
    emit_items(p, wdma(3)); emit_items(p, xdma(2, 0))
    c.stamp('issued')
    x_lds_addr(p, VA, 49)
    p('v_lshrrev_b32 v20, 5, v1')
    p('v_lshlrev_b32 v20, 3, v20')
    p('v_bfe_u32 v21, v1, 2, 2')
    p('v_add_u32 v20, v20, v21')
    p('v_lshlrev_b32 v20, 8, v20')
    p('v_and_b32 v22, 3, v1')
    p('v_lshlrev_b32 v22, 3, v22')
    p('v_add_u32 v20, v20, v22')
    p('v_add_u32 v20, 49152, v20')
    p('v_bfe_u32 v22, v1, 4, 1')
    p('v_xor_b32 v23, s48, v21')
    p('v_lshlrev_b32 v23, 6, v23')
    p('v_xor_b32 v24, s49, v22')
    p('v_lshlrev_b32 v24, 5, v24')
    p(f'v_add3_u32 v{VBK}, v20, v23, v24')
    p('s_or_b32 s46, s48, 2')
    p('v_xor_b32 v23, s46, v21')
    p('v_lshlrev_b32 v23, 6, v23')
    p('v_lshlrev_b32 v24, 5, v22')
    p(f'v_add3_u32 v{VBV}, v20, v23, v24')
    w64_dma_addr(p, VW2, 6144, 55)
    w64_tr_addr(p, VT, 48, 49152, 8)
    p(f'v_lshlrev_b32 v{VL16}, 4, v1')
    SET = [128, 160]
    def frA(st, tb, tt): return SET[st] + (tb*2 + tt)*4
    def frB(st, kv, tt): return SET[st] + 16 + (kv*2 + tt)*4
    def reads(j):
        st = j & 1; i = j >> 1; hp = j & 1
        r = []
        for tt in range(2):
            for tb in range(2):
                r.append(f'ds_read_b128 {vr(frA(st,tb,tt),4)}, v{VA+2*hp+tt} offset:{(i%3)*16384 + tb*4096}')
            for kv in range(2):
                vb = VBK if kv == 0 else VBV
                base = (j % 4)*8192 + tt*4096
                r.append(f'ds_read_b64_tr_b16 {vr(frB(st,kv,tt),2)}, v{vb} offset:{base}')
                r.append(f'ds_read_b64_tr_b16 {vr(frB(st,kv,tt)+2,2)}, v{vb} offset:{base+1024}')
        return r
    ACC = {(0,0): 64, (0,1): 80, (1,0): 96, (1,1): 112}
    def mfmas(j):
        st = j & 1
        m = []
        for tt in range(2):
            for tb in range(2):
                for kv in range(2):
                    a_ = ACC[(kv,tb)]
                    cc = '0' if (j == 0 and tt == 0) else vr(a_,16)
                    m.append(f'v_mfma_f32_32x32x16_bf16 {vr(a_,16)}, {vr(frA(st,tb,tt),4)}, {vr(frB(st,kv,tt),4)}, {cc}')
        return m
    p.barrier(tags={'x0', 'w0'})
    c.stamp('first')
    for r in reads(0): p(r)
    p.barrier(tags={'w1', 'x0'})
    for j in range(32):
        rd = reads(j+1) if j+1 < 32 else []
        fill = [[] for _ in range(8)]
        for n, r in enumerate(rd): fill[n//2].append(r)
        dm = []
        if j + 4 < 35: dm.append(wdma(j+4))
        if j & 1: st_, hf = (j-1)//2 + 3, 0
        else: st_, hf = (j-2)//2 + 3, 1
        dm.append(xdma(st_, hf))
        g = 0
        for grp in dm:
            fill[g].insert(0, grp[0])
            lds = [x for x in grp[1:] if isinstance(x, tuple)]
            rest = [x for x in grp[1:] if not isinstance(x, tuple)]
            fill[g+1].append(lds[0]); fill[g+2].append(lds[1])
            fill[g+2] += rest
            g += 3
        interleave(p, mfmas(j), fill)
        if j < 31:
            need = set()
            if j+2 < 32:
                need.add(f'w{j+2}'); need.add(f'x{(j+2)>>1}')
            p.barrier(tags=need)
        if j in (7, 15, 23): c.stamp(f'kv{j}')
    emit_items(p, xdma(18, 1))
    c.stamp('kvloop')
    PK = 128; VP = 144; KV = 160; Z = 176; ONE = 192; T = 196
    XK = 49152 + 3*8192
    for n in range(4): p(f'v_mov_b32 v{ONE+n}, 0x3f803f80')
    for tb in range(2):
        a_ = ACC[(1,tb)]
        for n in range(8): p(f'v_cvt_pk_bf16_f32 v{VP+tb*8+n}, v{a_+2*n}, v{a_+2*n+1}')
    for tb in range(2):
        a_ = ACC[(0,tb)]
        phi_block(p, list(range(a_, a_+16)), T)
        for n in range(8): p(f'v_cvt_pk_bf16_f32 v{PK+tb*8+n}, v{a_+2*n}, v{a_+2*n+1}')
        for s in range(2):
            cc = '0' if (tb == 0 and s == 0) else vr(KV,16)
            p(f'v_mfma_f32_32x32x16_bf16 {vr(KV,16)}, {vr(PK+tb*8+s*4,4)}, {vr(VP+tb*8+s*4,4)}, {cc}')
            cc = '0' if (tb == 0 and s == 0) else vr(Z,16)
            p(f'v_mfma_f32_32x32x16_bf16 {vr(Z,16)}, {vr(ONE,4)}, {vr(PK+tb*8+s*4,4)}, {cc}')
    p('s_lshl_b32 s46, s48, 1')
    p('s_add_u32 s47, s46, s49')
    p('s_lshl_b32 s47, s47, 11')
    p(f's_add_u32 s47, s47, {XK}')
    p(f'v_add_u32 v20, s47, v{VL16}')
    p('s_xor_b32 s47, s47, 2048')
    p(f'v_add_u32 v21, s47, v{VL16}')
    p('s_lshl_b32 s46, s42, 1')
    p('s_add_u32 s56, s46, s48')
    p('s_lshl_b32 s47, s56, 4')
    p('s_add_u32 s47, s47, s41')
    p('s_lshl_b32 s47, s47, 11')
    p('s_lshl_b32 s57, s49, 10')
    p('s_add_u32 s47, s47, s57')
    p('s_lshl_b32 s46, s56, 5')
    p('s_lshl_b32 s57, s41, 1')
    p('s_add_u32 s46, s46, s57')
    p('s_add_u32 s46, s46, s49')
    p('s_lshl_b32 s46, s46, 7')
    p('v_and_b32 v22, 31, v1')
    p('s_lshl_b32 s57, s49, 4')
    p('v_xor_b32 v22, s57, v22')
    p('v_lshlrev_b32 v22, 2, v22')
    p(f'ds_write_b128 v20, {vr(KV+8,4)}')
    p(f'ds_write_b128 v20, {vr(KV+12,4)} offset:1024')
    p(f'buffer_store_dword v{Z}, v22, s[36:39], s46 offen{SC}', tag='kvst')
    p.barrier()
    p(f'ds_read_b128 {vr(T,4)}, v21')
    p(f'ds_read_b128 {vr(T+4,4)}, v21 offset:1024')
    for n in range(8): p(f'v_add_f32 v{KV+n}, v{KV+n}, v{T+n}')
    for n in range(4): p(f'v_cvt_pk_bf16_f32 v{T+8+n}, v{KV+2*n}, v{KV+2*n+1}')
    p(f'buffer_store_dwordx4 {vr(T+8,4)}, v{VL16}, s[32:35], s47 offen{SC}', tag='kvst')
    VC = 26; VZERO = 27; VONE = 28
    p(f'v_mov_b32 v{VZERO}, 0'); p(f'v_mov_b32 v{VONE}, 1')
    p(f'buffer_load_dword v{VC}, v{VZERO}, s[{DBS}:{DBS+3}], 0 offen{SC}', tag='clr')
    c.stamp('kvepi')
    KP = 128; ZL = 192; ID = 208; ONE = 216
    p(f'v_and_b32 v{VZ}, 31, v1'); p(f'v_lshlrev_b32 v{VZ}, 2, v{VZ}')
    p('v_lshrrev_b32 v20, 5, v1'); p('v_lshlrev_b32 v20, 10, v20')
    p(f'v_add_u32 v{VZ}, v{VZ}, v20')
    p('v_and_b32 v20, 31, v1'); p('v_lshrrev_b32 v21, 5, v1'); p('v_lshlrev_b32 v21, 2, v21')
    p('v_sub_u32 v20, v20, v21')
    p('v_mov_b32 v22, 0x3f80'); p('v_mov_b32 v23, 0x3f800000')
    for s in range(2):
        for jp in range(4):
            d0 = 16*s + ((2*jp) & 3) + 8*((2*jp) >> 2)
            r = ID + 4*s + jp
            p(f'v_cmp_eq_u32 vcc, {d0}, v20'); p(f'v_cndmask_b32 v{r}, 0, v22, vcc')
            p(f'v_cmp_eq_u32 vcc, {d0+1}, v20'); p(f'v_cndmask_b32 v{r}, v{r}, v23, vcc')
    for n in range(4): p(f'v_mov_b32 v{ONE+n}, 0x3f803f80')
    p(f'v_and_b32 v{VP_}, 15, v1'); p(f'v_lshlrev_b32 v{VP_}, 2, v{VP_}')
    p('s_lshl_b32 s58, s42, 8')
    p('s_lshl_b32 s46, s41, 2'); p('s_add_u32 s69, s58, s46')
    QS = [64, 88]
    QACC = [32, 48]
    KS = 112
    def qfrA(st, tt): return QS[st] + 4*tt
    def qfrB(st, tt, tb): return QS[st] + 8 + (tt*2 + tb)*4
    def qreads(j):
        st = j & 1; i = j >> 1; hp = j & 1
        r = []
        for tt in range(2):
            t = 2*hp + tt
            base = (i % 4)*8192 + t*2048
            r.append(f'ds_read_b64_tr_b16 {vr(qfrA(st,tt),2)}, v{VT} offset:{base}')
            r.append(f'ds_read_b64_tr_b16 {vr(qfrA(st,tt)+2,2)}, v{VT} offset:{base+512}')
            for tb in range(2):
                r.append(f'ds_read_b128 {vr(qfrB(st,tt,tb),4)}, v{VA+t} offset:{((i+16)%3)*16384 + tb*4096}')
        return r
    def qmfmas(j):
        st = j & 1; m = []
        for tt in range(2):
            for tb in range(2):
                cc = '0' if (j == 0 and tt == 0) else vr(QACC[tb],16)
                m.append(f'v_mfma_f32_32x32x16_bf16 {vr(QACC[tb],16)}, {vr(qfrA(st,tt),4)}, {vr(qfrB(st,tt,tb),4)}, {cc}')
        return m
    def qdma(stage):
        a_ = xdma(stage + 16, 0)[:3] + xdma(stage + 16, 1)[1:]
        b = wdma(stage + 32)
        return a_, b
    p.barrier(tags={'x16', 'q0'})
    for r in qreads(0): p(r)
    KVA = 220; ZD = 228; ZB = 192; ZA = 244
    XB = 32768
    OSL = [49152, 57344, 65536, 0, 8192, 16384, 24576, 32768, 40960, 73728]
    srd_wo = 32
    VWO = 30
    JPUB = 5; JPOLL = 11; JCHK = 13
    kp_loads = []
    for n in range(16):
        kp_loads.append((f'buffer_load_dwordx4 {vr(KP+4*n,4)}, v{VL16}, s[32:35], s{57 if n % 4 == 0 or True else 57} offen' + (f' offset:{(n%4)*1024}' if n % 4 else '') + SC, 'kp'))
    for j in range(32):
        if j & 1:
            s = (j + 1) >> 1
            if s < 16: p.barrier(tags={f'x{s+16}', f'q{s}'} | ({'kvst', 'clr'} if j == JPUB else set()))
        if j == JPUB:
            l1 = c.label('pw'); l2 = c.label('pe')
            p('s_cmp_eq_u32 s40, 0')
            p(f's_cbranch_scc0 {l1}')
            cleared_check(c, VC, VZERO)
            flag_store(c, VONE, VZERO, 69)
            p.raw(f's_branch {l2}')
            p.raw(f'{l1}:')
            p.raw(f'buffer_load_dword v{VC}, v{VZERO}, s[{DBS}:{DBS+3}], 0 offen')
            p.raw(f'{l2}:')
            p.fake_vm('pub')
            c.stamp('qpub')
        rd = qreads(j+1) if j + 1 < 32 else []
        mf = qmfmas(j)
        fill = [[] for _ in range(4)]
        for n, r in enumerate(rd): fill[min(2, n // 3)].append(r)
        if j & 1:
            s3 = (j - 1)//2 + 3
            if s3 < 16:
                a_, b = qdma(s3)
                fill[0] = [a_[0]] + fill[0] + [a_[1]]
                fill[1] += [a_[2]]
                fill[2] += [a_[3], a_[4], b[0]]
                fill[3] += a_[5:] + b[1:]
        extra = []
        if j == JPOLL:
            fill[3].append((f'buffer_load_dword v{VC}, v{VP_}, s[{FLS}:{FLS+3}], s58 offen{SC}', 'poll'))
        if j == JCHK:
            ld = f'buffer_load_dword v{VC}, v{VP_}, s[{FLS}:{FLS+3}], s58 offen{SC}'
            spin(c, [ld], [f'v_cmp_ne_u32 vcc, 1, v{VC}'], VC)
            c.stamp('qchk')
            p('s_lshl_b32 s46, s56, 4'); p('s_lshl_b32 s47, s49, 3'); p('s_add_u32 s46, s46, s47')
            p('s_lshl_b32 s57, s46, 11')
            p('s_lshl_b32 s58, s56, 12')
        if JCHK <= j < JCHK + 4:
            q = j - JCHK
            for n in range(4*q, 4*q + 4):
                f = fill[n % 4]
                if n % 4 == 0 and n: f.append('s_add_u32 s57, s57, 4096')
                f.append(kp_loads[n])
            for n in range(4*q, 4*q + 4):
                u, jj = n >> 3, n & 7
                fill[n % 4].append((f'buffer_load_dword v{ZL+n}, v{VZ}, s[36:39], s58 offen offset:{u*2048 + jj*128}{SC}', 'zp'))
        J0 = 20
        if J0 <= j < J0 + 8:
            for n in (2*(j - J0), 2*(j - J0) + 1):
                cc = '0' if n == 0 else vr(KS,16)
                extra.append(f'v_mfma_f32_32x32x16_bf16 {vr(KS,16)}, {vr(ID+4*(n&1),4)}, {vr(KP+4*n,4)}, {cc}')
        if j == 21:
            for n in range(8): fill[3].append(f'v_cvt_pk_bf16_f32 v{ZB+n}, v{ZL+2*n}, v{ZL+2*n+1}')
        if j == 22:
            extra.append(f'v_mfma_f32_32x32x16_bf16 {vr(ZD,16)}, {vr(ZB,4)}, {vr(ONE,4)}, 0')
            extra.append(f'v_mfma_f32_32x32x16_bf16 {vr(ZD,16)}, {vr(ZB+4,4)}, {vr(ONE,4)}, {vr(ZD,16)}')
        if j == 25:
            for n in range(8): fill[3].append(f'v_cvt_pk_bf16_f32 v{ZA+n}, v{ZD+2*n}, v{ZD+2*n+1}')
        if j == 24:
            pass
        if j == 28:
            fill[0].insert(0, f'v_lshlrev_b32 v20, 4, v1')
            fill[0].insert(1, f's_lshl_b32 s46, s40, 12')
            fill[0].insert(2, f's_add_u32 s46, s46, {XB}')
            fill[1].insert(0, f'v_add_u32 v21, s46, v20')
            fill[1].insert(1, f's_xor_b32 s46, s46, {2*4096}')
            fill[2].insert(0, f'v_add_u32 v29, s46, v20')
            for n in range(4): fill[3].append(f'ds_write_b128 v21, {vr(KS+4*n,4)} offset:{n*1024}')
        if j == 30:
            for n in range(4): fill[3].append(f'ds_read_b128 {vr(KP+4*n,4)}, v29 offset:{n*1024}')
        interleave(p, mf, fill)
        for e in extra: p(e)
        if j == 26:
            srd(p, srd_wo, 8, 1024*2048)
            w64_dma_addr(p, VWO, 2048, 55)
            p('s_lshl_b32 s51, s40, 11')
            p('s_mul_i32 s54, s43, 131072')
        if j in (29, 30, 31):
            lst = {29: [0, 1], 30: [2, 3], 31: [4]}[j]
            for st in lst: emit_items(p, wodma(p, st, OSL, VWO, srd_wo))
    c.stamp('qloop')
    for n in range(16): p(f'v_add_f32 v{KS+n}, v{KS+n}, v{KP+n}')
    p.barrier()
    for st in range(5, 10): emit_items(p, wodma(p, st, OSL, VWO, srd_wo))
    for n in range(8): p(f'v_cvt_pk_bf16_f32 v{KVA+n}, v{KS+2*n}, v{KS+2*n+1}')
    srd(p, 24, 20, 4 << 20, WS_OF)
    PQ = 64; NUM = 128; DEN = 160; T = 196
    for tb in range(2):
        a_ = QACC[tb]
        phi_block(p, list(range(a_, a_+16)), T)
        for n in range(8): p(f'v_cvt_pk_bf16_f32 v{PQ+tb*8+n}, v{a_+2*n}, v{a_+2*n+1}')
        for s in range(2):
            cc = '0' if s == 0 else vr(DEN+16*tb,16)
            p(f'v_mfma_f32_32x32x16_bf16 {vr(DEN+16*tb,16)}, {vr(ZA+4*s,4)}, {vr(PQ+tb*8+4*s,4)}, {cc}')
        for s in range(2):
            cc = '0' if s == 0 else vr(NUM+16*tb,16)
            p(f'v_mfma_f32_32x32x16_bf16 {vr(NUM+16*tb,16)}, {vr(KVA+4*s,4)}, {vr(PQ+tb*8+4*s,4)}, {cc}')
    p('s_lshl_b32 s46, s41, 2'); p('s_lshl_b32 s47, s49, 1'); p('s_add_u32 s46, s46, s47')
    p('s_lshl_b32 s46, s46, 5'); p('s_add_u32 s46, s46, s56'); p('s_lshl_b32 s46, s46, 11')
    for tb in range(2):
        d = DEN + 16*tb; nn = NUM + 16*tb
        p(f'v_add_f32 v{d}, {EPS}, v{d}')
        p(f'v_rcp_f32 v{d}, v{d}')
        for n in range(16): p(f'v_mul_f32 v{nn+n}, v{nn+n}, v{d}')
        for n in range(8): p(f'v_cvt_pk_bf16_f32 v{nn+n}, v{nn+2*n}, v{nn+2*n+1}')
        if tb: p('s_add_u32 s46, s46, 65536')
        p(f'buffer_store_dwordx4 {vr(nn,4)}, v{VL16}, s[24:27], s46 offen{SC}', tag='ofst')
        p(f'buffer_store_dwordx4 {vr(nn+4,4)}, v{VL16}, s[24:27], s46 offen offset:1024{SC}', tag='ofst')
    c.stamp('ofst')
    VT3 = 12
    w64_tr_addr(p, VT3, None, 0, 4)
    p(f'v_xor_b32 v{VT3+1}, 64, v{VT3}')
    VT3B = 6
    p(f'v_add_u32 v{VT3B}, 49152, v{VT3}'); p(f'v_add_u32 v{VT3B+1}, 49152, v{VT3+1}')
    p('s_lshl_b32 s46, s41, 2'); p('s_add_u32 s56, s46, s40')
    p('s_lshl_b32 s56, s56, 16')
    p('s_lshl_b32 s52, s43, 12')
    p('s_lshl_b32 s58, s41, 8'); p(f's_add_u32 s58, s58, {FL_O}')
    p('s_lshl_b32 s46, s42, 2'); p('s_add_u32 s69, s58, s46')
    srd(p, 36, 16, 2048*4096)
    BF = 64
    ASET = [192, 208]
    OACC = [32, 48]
    def frA3(st, tt, cb): return ASET[st] + (tt*2 + cb)*4
    def reads3(j):
        st = j & 1; i = j >> 1; hp = j & 1; r = []
        for tt in range(2):
            t = 2*hp + tt
            for cb in range(2):
                so = OSL[i % 10]
                va = (VT3 if so < 49152 else VT3B) + cb
                base = (so if so < 49152 else so - 49152) + t*2048
                r.append(f'ds_read_b64_tr_b16 {vr(frA3(st,tt,cb),2)}, v{va} offset:{base}')
                r.append(f'ds_read_b64_tr_b16 {vr(frA3(st,tt,cb)+2,2)}, v{va} offset:{base+1024}')
        return r
    def mfmas3(j):
        st = j & 1; i = j >> 1; hp = j & 1; m = []
        for tt in range(2):
            t = 2*hp + tt
            b = BF + (i % NB)*16 + 4*t
            for cb in range(2):
                cc = '0' if (j == 0 and tt == 0) else vr(OACC[cb],16)
                m.append(f'v_mfma_f32_32x32x16_bf16 {vr(OACC[cb],16)}, {vr(frA3(st,tt,cb),4)}, {vr(b,4)}, {cc}')
        return m
    def oload(stage):
        base = BF + (stage % NB)*16
        a_ = ['s_add_u32 s57, s56, s52']
        for f in range(4):
            a_.append((f'buffer_load_dwordx4 {vr(base+4*f,4)}, v{VL16}, s[24:27], s57 offen' + (f' offset:{1024*f}' if f else '') + SC, f'o{stage}'))
        a_ += ['s_add_u32 s52, s52, 4096', 's_and_b32 s52, s52, 0xffff']
        return a_
    p('s_waitcnt vmcnt(0)')
    p.barrier()
    c.stamp('ofdrain')
    for r in reads3(0): p(r)
    def body():
        flag_store(c, VONE, VZERO, 69)
        raw_spin(c, [f'buffer_load_dword v{VC}, v{VP_}, s[{FLS}:{FLS+3}], s58 offen{SC}'], [f'v_cmp_ne_u32 vcc, 1, v{VC}'])
    sync_wave0(c, body, 0)
    p('s_barrier')
    c.stamp('ofready')
    for st in range(NB - 1): emit_items(p, oload(st))
    for j in range(32):
        i = j >> 1
        if j == 14: p.barrier()
        if j == 19: p.barrier(tags={f'wo{s}' for s in range(10, 16)})
        rd = reads3(j+1) if j + 1 < 32 else []
        fill = [[] for _ in range(4)]
        for n, r in enumerate(rd): fill[min(2, n // 3)].append(r)
        if j & 1:
            s3 = i + NB - 1
            if s3 < 16:
                a_ = oload(s3)
                fill[0] += a_[:2]; fill[1] += [a_[2]]; fill[2] += [a_[3]]; fill[3] += a_[4:]
        if j in (14, 15, 16):
            lst = {14: [10, 11], 15: [12, 13], 16: [14, 15]}[j]
            for n, st in enumerate(lst):
                d = wodma(p, st, OSL, VWO, srd_wo)
                fill[2*n] = [d[0]] + fill[2*n] + [d[1]]
                fill[2*n+1] += d[2:]
        interleave(p, mfmas3(j), fill)
        if j in (7, 15, 23): c.stamp(f'o{j}')
    c.stamp('oloop')
    O = 64
    p('v_and_b32 v20, 31, v1')
    p('s_lshl_b32 s46, s41, 7'); p('s_lshl_b32 s47, s40, 5'); p('s_add_u32 s46, s46, s47')
    p('v_add_u32 v20, s46, v20')
    p('v_lshlrev_b32 v20, 12, v20')
    p('v_lshrrev_b32 v21, 5, v1'); p('v_lshlrev_b32 v21, 4, v21')
    p('v_add3_u32 v20, v20, v21, s55')
    for cb in range(2):
        a_ = OACC[cb]
        for gp in range(2):
            o = O + (cb*2 + gp)*4
            for g in range(2):
                r = a_ + 8*gp + 4*g
                p(f'v_cvt_pk_bf16_f32 v{o+2*g}, v{r}, v{r+1}')
                p(f'v_cvt_pk_bf16_f32 v{o+2*g+1}, v{r+2}, v{r+3}')
            p(f'v_permlane32_swap_b32 v{o}, v{o+2}')
            p(f'v_permlane32_swap_b32 v{o+1}, v{o+3}')
            p(f'buffer_store_dwordx4 {vr(o,4)}, v20, s[36:39], 0 offen offset:{cb*64 + gp*32}{SCO}')
    c.finish()

def wodma(p, stage, OSL, VWO, srd_wo):
    r = f's[{srd_wo}:{srd_wo+3}]'
    b = [f's_add_u32 m0, s51, {OSL[stage % 10]}']
    b.append((f'buffer_load_dwordx4 v{VWO}, {r}, s54 offen lds', f'wo{stage}'))
    b.append((f'buffer_load_dwordx4 v{VWO+1}, {r}, s54 offen offset:1024 lds', f'wo{stage}'))
    b += ['s_add_u32 s54, s54, 131072', f's_cmp_eq_u32 s54, {16*131072}', 's_cselect_b32 s54, 0, s54']
    return b

from genB import gen_angles, gen_F_split, gen_F_int, gen_TW, twiddle, tw_ops, st1, fft2, wave_ids
def gen_B(c):
    p = c.p
    wave_ids(p)
    srd(p, FLS, 20, FL_BYTES, WS_FL)
    srd(p, DBS, 18, 256)
    VZERO = 17; VONE = 18; VC = 19
    p(f'v_mov_b32 v{VZERO}, 0'); p(f'v_mov_b32 v{VONE}, 1')
    p('v_lshlrev_b32 v2, 4, v1')
    lab = c.label('noclr')
    p('s_or_b32 s46, s2, s40'); p('s_cmp_eq_u32 s46, 0'); p(f's_cbranch_scc0 {lab}')
    p.raw('v_mov_b32 v20, 0'); p.raw('v_mov_b32 v21, 0'); p.raw('v_mov_b32 v22, 0'); p.raw('v_mov_b32 v23, 0')
    for q in range(4):
        p.raw(f's_mov_b32 s46, {q*4096}')
        for k in range(4):
            p.raw(f'buffer_store_dwordx4 v[20:23], v2, s[{FLS}:{FLS+3}], s46 offen offset:{k*1024}{SC}')
    p.raw(f'{lab}:')
    XR = 0; WT = 16384; ST = 32768; C5 = 57344
    srd(p, 24, 10, 2048*2048)
    srd(p, 32, 20, X12_BYTES, WS_X1)
    srd(p, 36, 20, WP_BYTES, WS_WP)
    p('s_bitcmp1_b32 s40, 0')
    p('s_cselect_b32 s28, s14, s12'); p('s_cselect_b32 s29, s15, s13')
    p(f's_mov_b32 s30, {W_BYTES}'); p('s_mov_b32 s31, 0x00020000')
    p('s_lshr_b32 s41, s2, 5')
    p('s_and_b32 s42, s2, 31')
    p('s_lshl_b32 s43, s41, 2'); p('s_add_u32 s43, s43, s40'); p('s_lshl_b32 s43, s43, 5'); p('s_add_u32 s43, s43, s42')
    p('s_lshl_b32 s43, s43, 12')
    p('s_lshl_b32 m0, s40, 12')
    for k in range(4):
        p(f'buffer_load_dwordx4 v2, s[24:27], s43 offen' + (f' offset:{1024*k}' if k else '') + ' lds', tag='x')
    p('s_and_b32 s44, s2, 3')
    p('s_bfe_u32 s45, s2, 0x40002')
    p('s_lshr_b32 s46, s2, 6')
    p('s_lshl_b32 s47, s44, 3')
    p('s_lshl_b32 s48, s45, 6')
    p('s_add_u32 s47, s47, s48')
    p('s_lshr_b32 s48, s40, 1'); p('s_lshl_b32 s48, s48, 10')
    p('s_add_u32 s47, s47, s48')
    p('s_mul_i32 s47, s47, 1026')
    p('s_lshl_b32 s48, s46, 8')
    p('s_add_u32 s49, s47, s48')
    p('v_lshrrev_b32 v20, 4, v1')
    p('v_mul_u32_u24 v21, 1026, v20')
    p('v_and_b32 v22, 1, v20'); p('v_lshlrev_b32 v22, 2, v22')
    p('v_or_b32 v22, s40, v22')
    p('v_lshlrev_b32 v22, 1, v22')
    p('v_and_b32 v23, 15, v1')
    p('v_xor_b32 v22, v22, v23')
    p('v_lshlrev_b32 v22, 4, v22')
    p('v_add_u32 v3, v21, v22')
    p('s_lshl_b32 s50, s40, 12'); p(f's_add_u32 m0, s50, {WT}')
    for e in range(2):
        for cq in range(2):
            imm = e*2048 + cq*1024
            d = (32*e + 4*cq)*1026 - imm
            if d: p(f's_add_u32 s51, s49, {d}')
            p(f'buffer_load_dwordx4 v3, s[28:31], s{51 if d else 49} offen' + (f' offset:{imm}' if imm else '') + ' lds', tag='w')
    p('s_and_b32 s52, s45, 1'); p('s_lshr_b32 s53, s45, 2'); p('s_lshl_b32 s53, s53, 1'); p('s_add_u32 s52, s52, s53')
    p('s_lshl_b32 s52, s52, 10')
    p('s_bfe_u32 s53, s45, 0x10001'); p('s_lshl_b32 s53, s53, 9'); p('s_add_u32 s52, s52, s53')
    p('s_lshl_b32 s53, s44, 7'); p('s_add_u32 s52, s52, s53')
    p('v_and_b32 v20, 7, v1'); p('v_bfe_u32 v21, v1, 3, 1')
    p('v_lshlrev_b32 v22, 5, v21'); p('v_add_u32 v22, v22, v20'); p('v_mul_u32_u24 v22, 1026, v22'); p('v_add_u32 v4, 1024, v22')
    p('v_lshlrev_b32 v22, 4, v20'); p('v_lshlrev_b32 v23, 3, v21'); p('v_add_u32 v16, v22, v23')
    p('s_lshl_b32 s53, s40, 1'); p(f's_add_u32 s53, s53, {C5}'); p('v_add_u32 v5, s53, v16')
    p('s_cmp_eq_u32 s46, 3'); p('s_cselect_b32 s54, 0xffff, 0'); p('s_mov_b32 s55, 0')
    p('s_mov_b64 exec, s[54:55]')
    p('buffer_load_ushort v6, v4, s[28:31], s47 offen', tag='?c512')
    p('s_mov_b64 exec, -1')
    c.stamp('issued')
    F = 32; TC = 56; TS = 72; DATA = 88; DR = 104; DI = 120; ANG = 136; T = 152
    gen_angles(p, ANG, 20, 21, 22)
    gen_F_split(p, F, ANG, T)
    gen_TW(p, TC, TS, ANG)
    lab = c.label('nosig')
    p('s_or_b32 s53, s2, s40'); p('s_cmp_eq_u32 s53, 0'); p(f's_cbranch_scc0 {lab}')
    p.raw('s_waitcnt vmcnt(8)')
    p.raw('s_mov_b64 exec, 1')
    p.raw(f'buffer_store_dword v{VONE}, v{VZERO}, s[{DBS}:{DBS+3}], 0 offen{SC}')
    p.raw('s_mov_b64 exec, -1')
    p.raw(f'{lab}:')
    c.stamp('tab1')
    p('s_mov_b64 exec, 0xffff')
    p('ds_write_b16 v5, v6')
    p('s_mov_b64 exec, -1')
    p('v_lshrrev_b32 v20, 5, v1'); p('v_lshlrev_b32 v20, 2, v20')
    p('v_bfe_u32 v21, v1, 2, 2'); p('v_add_u32 v20, v20, v21'); p('v_lshlrev_b32 v20, 6, v20')
    p('v_bfe_u32 v21, v1, 4, 1'); p('v_lshlrev_b32 v21, 5, v21')
    p('v_and_b32 v22, 3, v1'); p('v_lshlrev_b32 v22, 3, v22')
    p('v_add3_u32 v20, v20, v21, v22')
    p('s_lshl_b32 s53, s40, 12'); p('v_add_u32 v7, s53, v20')
    p('v_lshrrev_b32 v20, 5, v1'); p(f'v_mul_u32_u24 v20, {4*33*16}, v20')
    p('v_and_b32 v21, 31, v1'); p('v_lshlrev_b32 v21, 4, v21')
    p('s_lshl_b32 s53, s40, 2'); p(f's_add_u32 s53, s53, {ST}')
    p('v_add3_u32 v8, v20, v21, s53')
    p.wait_dma({'x'})
    c.stamp('x1')
    for t in range(4):
        p(f'ds_read_b64_tr_b16 {vr(DATA+4*t,2)}, v7 offset:{t*512}')
        p(f'ds_read_b64_tr_b16 {vr(DATA+4*t+2,2)}, v7 offset:{t*512+2048}')
    Fre = lambda t: vr(F+6*t+2, 4)
    Fim = lambda t: vr(F+6*t, 4)
    for t in range(4):
        p(f'v_mfma_f32_32x32x16_bf16 {vr(DR,16)}, {vr(DATA+4*t,4)}, {Fre(t)}, {"0" if t == 0 else vr(DR,16)}')
        p(f'v_mfma_f32_32x32x16_bf16 {vr(DI,16)}, {vr(DATA+4*t,4)}, {Fim(t)}, {"0" if t == 0 else vr(DI,16)}')
    p('v_and_b32 v20, 7, v0'); p('v_lshrrev_b32 v21, 3, v0')
    p('v_and_b32 v22, 3, v20')
    p('v_mul_u32_u24 v23, 33, v22'); p('v_add_u32 v23, v23, v21')
    p(f'v_sub_u32 v24, {31*33+32}, v23')
    p('v_cmp_eq_u32 vcc, 0, v21'); p('v_addc_co_u32 v24, vcc, 0, v24, vcc')
    p('v_cmp_lt_u32 vcc, 3, v20')
    p('v_cndmask_b32 v23, v23, v24, vcc')
    p('v_lshlrev_b32 v23, 4, v23'); p(f'v_add_u32 v9, {ST}, v23')
    p(f'v_mov_b32 v24, {4*33*16}'); p(f'v_mov_b32 v25, {-4*33*16 & 0xffffffff}')
    p('v_cndmask_b32 v10, v24, v25, vcc')
    p('v_mov_b32 v24, 0'); p('v_mov_b32 v25, 0x80000000')
    p('v_cndmask_b32 v11, v24, v25, vcc')
    p('v_cmp_eq_u32 vcc, 4, v0')
    p(f'v_mov_b32 v24, {ST}')
    p('v_cndmask_b32 v12, v9, v24, vcc')
    p('v_lshlrev_b32 v13, 4, v0')
    p(f's_mul_i32 s56, s2, {LP}')
    for r, a in twiddle(p, DR, DI, TC, TS, T):
        t = r >> 2; h = (r >> 1) & 1
        p(f'v_cvt_pk_bf16_f32 v{DATA+4*t+h}, v{a}, v{a+1}')
        p(f'v_cvt_pk_bf16_f32 v{DATA+4*t+2+h}, v{DI+r}, v{DI+r+1}')
    for t in range(4):
        p(f'v_mfma_f32_32x32x16_bf16 {vr(DR,16)}, {Fre(t)}, {vr(DATA+4*t,4)}, {"0" if t == 0 else vr(DR,16)}')
        p(f'v_mfma_f32_32x32x16_bf16 {vr(DI,16)}, {Fim(t)}, {vr(DATA+4*t,4)}, {"0" if t == 0 else vr(DI,16)}')
    p('v_bfe_u32 v20, v1, 2, 2')
    p('v_lshrrev_b32 v21, 4, v1')
    p('v_and_b32 v22, 1, v21'); p('v_lshlrev_b32 v22, 2, v22'); p('v_or_b32 v22, v22, v20')
    p('s_lshl_b32 s53, s40, 1'); p('v_xor_b32 v22, s53, v22'); p('v_lshlrev_b32 v22, 5, v22')
    p('v_lshlrev_b32 v20, 12, v20'); p('v_lshlrev_b32 v23, 8, v21'); p('v_add3_u32 v20, v20, v23, v22')
    p('v_and_b32 v23, 3, v1'); p('v_lshlrev_b32 v23, 3, v23')
    p(f'v_add_u32 v20, {WT}, v20'); p('v_add_u32 v14, v20, v23'); p('v_xor_b32 v15, 32, v14')
    p('v_and_b32 v20, 15, v1'); p('v_lshlrev_b32 v20, 13, v20'); p('v_lshlrev_b32 v21, 4, v21'); p('v_add_u32 v3, v20, v21')
    p('s_lshl_b32 s53, s46, 7'); p('s_lshl_b32 s57, s40, 5'); p('s_add_u32 s53, s53, s57'); p('s_lshl_b32 s53, s53, 13'); p('s_add_u32 s57, s53, s52')
    p(f's_add_u32 s58, s57, {16*8192}')
    for r in range(16):
        p(f'v_cvt_pk_bf16_f32 v{DATA+r}, v{DR+r}, v{DI+r}')
        p(f'ds_write_b32 v8, v{DATA+r} offset:{KR(r)*33*16}')
    p.barrier(tags={'w'})
    WR = 136
    for cbb in range(2):
        for cq in range(2):
            b = WR + (cbb*2 + cq)*4
            for e in range(2):
                p(f'ds_read_b64_tr_b16 {vr(b+2*e,2)}, v{14+cbb} offset:{e*2048 + cq*1024}')
    SR = 152
    for g in range(4):
        if g == 0: p(f'ds_read_b128 {vr(SR,4)}, v12')
        else:
            p(f'v_add_u32 v9, v9, v10')
            p(f'ds_read_b128 {vr(SR+4*g,4)}, v9')
    p(f'v_add_u32 v9, v9, v10')
    p(f'ds_read_b128 {vr(SR+16,4)}, v9')
    p(f'ds_read_b64 v[172:173], v16 offset:{C5}')
    for cbb in range(2):
        for cq in range(2):
            b = WR + (cbb*2 + cq)*4
            p(f'buffer_store_dwordx4 {vr(b,4)}, v3, s[36:39], s{57+cbb} offen' + (f' offset:{cq*64}' if cq else '') + SC)
    for g in range(5):
        for n in range(4): p(f'v_xor_b32 v{SR+4*g+n}, v11, v{SR+4*g+n}')
        if g == 4:
            p('s_cmp_eq_u32 s40, 0'); p('s_cselect_b32 s54, 0xff, 0'); p('s_mov_b32 s55, 0'); p('s_mov_b64 exec, s[54:55]')
        p(f'buffer_store_dwordx4 {vr(SR+4*g,4)}, v13, s[32:35], s56 offen{SC}', tag=('?l128' if g == 4 else None))
        p('s_add_u32 s56, s56, 4096')
    p('s_cmp_eq_u32 s46, 3'); p('s_cselect_b32 s54, 0xffff, 0'); p('s_cmp_eq_u32 s40, 0'); p('s_cselect_b32 s54, s54, 0')
    p(f's_add_u32 s53, s52, {512*8192}')
    p('s_mov_b64 exec, s[54:55]')
    p(f'buffer_store_dwordx2 v[172:173], v16, s[36:39], s53 offen{SC}', tag='?c5s')
    p('s_mov_b64 exec, -1')
    p(f'buffer_load_dword v{VC}, v{VZERO}, s[{DBS}:{DBS+3}], 0 offen{SC}', tag='clr')
    c.stamp('b1st')
    FR = 32; FI = 48; TC = 64; TS = 80
    gen_angles(p, 192, 28, 29, 30)
    gen_F_int(p, FR, FI, 192, 20)
    gen_TW(p, TC, TS, 192)
    p('s_lshl_b32 s69, s2, 4'); p(f's_add_u32 s69, s69, {FL_1}')
    p('s_waitcnt vmcnt(0)')
    p.barrier()
    def body():
        cleared_check(c, VC, VZERO)
        flag_store(c, VONE, VZERO, 69)
    sync_wave0(c, body, 0)
    c.stamp('b1pub')
    labB3 = c.label('b3')
    p('s_cmp_lt_u32 s2, 129')
    p(f's_cbranch_scc0 {labB3}')
    XL = 0; ST = 32768
    srd(p, 24, 20, X12_BYTES, WS_X1)
    srd(p, 28, 20, WP_BYTES, WS_WP)
    srd(p, 32, 20, X12_BYTES, WS_X2)
    CT = 96; SN = 112; WP = 128; DU = 160; DV = 176; UR = 192; UI = 208; VR = 224; VI = 240
    p('v_lshrrev_b32 v20, 3, v1'); p(f'v_mul_u32_u24 v20, {LP}, v20')
    p('v_lshrrev_b32 v21, 4, v1'); p('v_and_b32 v22, 7, v1'); p('v_xor_b32 v21, v21, v22'); p('v_lshlrev_b32 v21, 4, v21')
    p('v_add_u32 v2, v20, v21'); p('v_xor_b32 v21, 64, v21'); p('v_add_u32 v3, v20, v21')
    p(f's_mul_i32 s41, s40, {64*LP}'); p('s_lshl_b32 s42, s2, 7'); p('s_add_u32 s41, s41, s42')
    p('s_lshl_b32 s43, s40, 13')
    p('v_lshlrev_b32 v4, 4, v1')
    p('v_add_u32 v11, s43, v4')
    p('s_and_b32 s44, s2, 31'); p('s_lshr_b32 s45, s2, 5')
    p('s_lshl_b32 s46, s45, 2'); p('s_add_u32 s46, s46, s40'); p('s_lshl_b32 s46, s46, 5'); p('s_add_u32 s48, s46, s44')
    p('s_lshl_b32 s49, s48, 13')
    ANG = UR; T = 20
    p('v_and_b32 v20, 31, v1'); p('v_cvt_f32_u32 v20, v20'); p(f'v_mul_f32 v20, {fl(1/2048)}, v20')
    p('v_lshrrev_b32 v21, 5, v1'); p('v_cvt_f32_u32 v21, v21'); p(f'v_fmamk_f32 v20, v21, {f2h(1/16)}, v20')
    for r in range(16):
        k = KR(r)
        if k == 0: p(f'v_mov_b32 v{ANG}, v20')
        else: p(f'v_add_f32 v{ANG+r}, {fl(k/64)}, v20')
    for r in range(16):
        p(f'v_cos_f32 v{CT+r}, v{ANG+r}'); p(f'v_sin_f32 v{SN+r}, v{ANG+r}')
    p('v_lshlrev_b32 v20, 7, v1')
    p('v_bfe_u32 v21, v1, 1, 3'); p('v_xor_b32 v21, s40, v21'); p('v_lshlrev_b32 v21, 4, v21')
    p('v_add_u32 v5, v20, v21'); p('v_xor_b32 v6, 64, v5')
    p('v_mul_u32_u24 v20, 144, v1')
    p('s_lshl_b32 s50, s40, 2'); p(f's_add_u32 s50, s50, {ST}'); p('v_add_u32 v7, s50, v20')
    p('s_sub_u32 s51, 3, s40'); p('s_sub_u32 s52, 4, s40'); p('s_and_b32 s52, s52, 3')
    p('s_cmp_eq_u32 s44, 0'); p('s_cselect_b32 s51, s52, s51')
    p('s_lshl_b32 s51, s51, 2'); p(f's_add_u32 s51, s51, {ST+16}'); p('v_add_u32 v8, s51, v20')
    p('v_lshrrev_b32 v20, 3, v0'); p('v_and_b32 v21, 7, v0'); p('v_lshlrev_b32 v21, 4, v21')
    p('v_mul_u32_u24 v22, 144, v20'); p(f'v_add_u32 v22, {ST}, v22'); p('v_add_u32 v9, v22, v21')
    p(f'v_mul_u32_u24 v22, {LP}, v20'); p('v_add_u32 v10, v22, v21')
    p('s_lshl_b32 s53, s2, 7')
    p(f's_mov_b32 s58, {FL_1}')
    c.stamp('tab2')
    def body():
        ld = [f'buffer_load_dword v{20+k}, v4, s[{FLS}:{FLS+3}], s58 offen offset:{k*1024}{SC}' for k in range(4)]
        ck = ['v_and_b32 v20, v20, v21', 'v_and_b32 v22, v22, v23', 'v_and_b32 v20, v20, v22', 'v_cmp_ne_u32 vcc, 1, v20']
        raw_spin(c, ld, ck)
    sync_wave0(c, body, 0)
    p('s_barrier')
    c.stamp('f1ok')
    for k in range(8):
        p(f'buffer_load_dwordx4 {vr(VR+4*k,4)}, v{2+(k&1)}, s[24:27], s41 offen{SC}', tag='x')
        if k < 7: p(f's_add_u32 s41, s41, {8*LP}')
    for m in range(8):
        if m == 4: p('s_add_u32 s49, s49, 4096')
        p(f'buffer_load_dwordx4 {vr(WP+4*m,4)}, v4, s[28:31], s49 offen' + (f' offset:{(m&3)*1024}' if m & 3 else '') + SC, tag='wp')
    for k in range(8):
        p(f'ds_write_b128 v11, {vr(VR+4*k,4)} offset:{k*1024}')
    p.barrier()
    c.stamp('x2')
    for t in range(4): p(f'ds_read_b128 {vr(DU+4*t,4)}, v5 offset:{t*8192}')
    for t in range(4): p(f'ds_read_b128 {vr(DV+4*t,4)}, v6 offset:{t*8192}')
    fft2(p, DU, DV, FR, FI, TC, TS, UR, UI, VR, VI, 20)
    c.stamp('fwd')
    P0, P1, P2, P3, Q0, Q1, R0, R1, R2, R3 = [12 + 2*n for n in range(10)]
    v2 = lambda x: vr(x, 2)
    N = lambda *a: 'neg_lo:[%s] neg_hi:[%s]' % (','.join(map(str, a)), ','.join(map(str, a)))
    p('s_mov_b32 s54, 0xffff0000')
    for m in range(8):
        r = 2*m; w = WP + 4*m
        p(f'v_lshlrev_b32 v{P0}, 16, v{w}'); p(f'v_lshlrev_b32 v{P0+1}, 16, v{w+2}')
        p(f'v_lshlrev_b32 v{P2}, 16, v{w+1}'); p(f'v_lshlrev_b32 v{P2+1}, 16, v{w+3}')
        p(f'v_and_b32 v{P1}, s54, v{w}'); p(f'v_and_b32 v{P1+1}, s54, v{w+2}')
        p(f'v_and_b32 v{P3}, s54, v{w+1}'); p(f'v_and_b32 v{P3+1}, s54, v{w+3}')
        p(f'v_pk_add_f32 {v2(Q0)}, {v2(P0)}, {v2(P2)}')
        p(f'v_pk_add_f32 {v2(Q1)}, {v2(P1)}, {v2(P3)}')
        p(f'v_pk_add_f32 {v2(P0)}, {v2(P0)}, {v2(P2)} {N(0,1)}')
        p(f'v_pk_add_f32 {v2(P1)}, {v2(P1)}, {v2(P3)} {N(0,1)}')
        p(f'v_pk_fma_f32 {v2(P2)}, {v2(P0)}, {v2(SN+r)}, {v2(Q0)} {N(1,0,0)}')
        p(f'v_pk_fma_f32 {v2(P3)}, {v2(P1)}, {v2(SN+r)}, {v2(Q1)} {N(1,0,0)}')
        p(f'v_pk_fma_f32 {v2(Q0)}, {v2(P0)}, {v2(SN+r)}, {v2(Q0)}')
        p(f'v_pk_fma_f32 {v2(Q1)}, {v2(P1)}, {v2(SN+r)}, {v2(Q1)}')
        p(f'v_pk_mul_f32 {v2(P0)}, {v2(P0)}, {v2(CT+r)}')
        p(f'v_pk_mul_f32 {v2(P1)}, {v2(P1)}, {v2(CT+r)}')
        ur, ui, vr_, vi = v2(UR+r), v2(UI+r), v2(VR+r), v2(VI+r)
        Ar, Ai, Cr, Ci, Br, Bi = v2(P2), v2(P3), v2(Q0), v2(Q1), v2(P0), v2(P1)
        p(f'v_pk_mul_f32 {v2(R0)}, {Ar}, {ur}'); p(f'v_pk_mul_f32 {v2(R1)}, {Ar}, {ui}')
        p(f'v_pk_mul_f32 {v2(R2)}, {Cr}, {vr_}'); p(f'v_pk_mul_f32 {v2(R3)}, {Cr}, {vi}')
        p(f'v_pk_fma_f32 {v2(R0)}, {Ai}, {ui}, {v2(R0)} {N(1,0,0)}'); p(f'v_pk_fma_f32 {v2(R1)}, {Ai}, {ur}, {v2(R1)}')
        p(f'v_pk_fma_f32 {v2(R2)}, {Ci}, {vi}, {v2(R2)} {N(1,0,0)}'); p(f'v_pk_fma_f32 {v2(R3)}, {Ci}, {vr_}, {v2(R3)}')
        p(f'v_pk_fma_f32 {v2(R0)}, {Br}, {vi}, {v2(R0)} {N(1,0,0)}'); p(f'v_pk_fma_f32 {v2(R1)}, {Br}, {vr_}, {v2(R1)}')
        p(f'v_pk_fma_f32 {v2(R2)}, {Br}, {ui}, {v2(R2)}'); p(f'v_pk_fma_f32 {v2(R3)}, {Br}, {ur}, {v2(R3)} {N(1,0,0)}')
        p(f'v_pk_fma_f32 {v2(R0)}, {Bi}, {vr_}, {v2(R0)} {N(1,0,0)}'); p(f'v_pk_fma_f32 {v2(R1)}, {Bi}, {vi}, {v2(R1)} {N(1,0,0)}')
        p(f'v_pk_fma_f32 {v2(R2)}, {Bi}, {ur}, {v2(R2)}'); p(f'v_pk_fma_f32 {v2(R3)}, {Bi}, {ui}, {v2(R3)}')
        p(f'v_cvt_pk_bf16_f32 v{DU+r}, v{R1}, v{R0}'); p(f'v_cvt_pk_bf16_f32 v{DU+r+1}, v{R1+1}, v{R0+1}')
        p(f'v_cvt_pk_bf16_f32 v{DV+r}, v{R3}, v{R2}'); p(f'v_cvt_pk_bf16_f32 v{DV+r+1}, v{R3+1}, v{R2+1}')
    c.stamp('point')
    fft2(p, DU, DV, FR, FI, TC, TS, UR, UI, VR, VI, 20)
    c.stamp('inv')
    noself = c.label('noself')
    p('s_and_b32 s55, s48, 511'); p('s_cmp_eq_u32 s55, 0')
    p('s_nop 7'); p('s_nop 7')
    p(f's_cbranch_scc0 {noself}')
    for r in range(0, 16, 2):
        p(f'v_pk_add_f32 {v2(UR+r)}, {v2(UR+r)}, {v2(VR+r)} {N(0,1)}')
        p(f'v_pk_add_f32 {v2(UI+r)}, {v2(UI+r)}, {v2(VI+r)}')
        p(f'v_pk_mul_f32 {v2(UR+r)}, {v2(UR+r)}, 0.5 op_sel_hi:[1,0]')
        p(f'v_pk_mul_f32 {v2(UI+r)}, {v2(UI+r)}, 0.5 op_sel_hi:[1,0]')
        p(f'v_pk_add_f32 {v2(VR+r)}, {v2(UR+r)}, 0 op_sel_hi:[1,0] {N(1,0)}')
        p(f'v_pk_add_f32 {v2(VI+r)}, {v2(UI+r)}, 0 op_sel_hi:[1,0]')
    p.raw(f'{noself}:')
    p.reset()
    for r in range(16):
        p(f'v_cvt_pk_bf16_f32 v{DU+r}, v{UR+r}, v{UI+r}')
        p(f'v_cvt_pk_bf16_f32 v{DV+r}, -v{VR+r}, v{VI+r}')
        off = (r >> 2)*9216 + (r & 3)*32
        p(f'ds_write_b32 v7, v{DU+r} offset:{off}')
        p(f'ds_write_b32 v8, v{DV+r} offset:{off}')
    p.barrier()
    for g in range(8): p(f'ds_read_b128 {vr(UR+4*g,4)}, v9 offset:{g*4608}')
    for g in range(8):
        p(f'buffer_store_dwordx4 {vr(UR+4*g,4)}, v10, s[32:35], s53 offen{SC}')
        if g < 7: p(f's_add_u32 s53, s53, {32*LP}')
    c.stamp('b2st')
    p(f'v_mov_b32 v{VZERO}, 0'); p(f'v_mov_b32 v{VONE}, 1')
    p('s_lshl_b32 s69, s2, 4'); p(f's_add_u32 s69, s69, {FL_2}')
    p('s_waitcnt vmcnt(0)')
    p.barrier()
    def body():
        flag_store(c, VONE, VZERO, 69)
    sync_wave0(c, body, 0)
    c.stamp('b2pub')
    p.raw(f'{labB3}:')
    p.reset()
    srd(p, 24, 20, X12_BYTES, WS_X2)
    srd(p, 32, 16, 2048*4096)
    D = 96; R = 112; I_ = 128; FX = 160; T = 20
    p(f's_mov_b32 s46, {f2h(2.0**-21)}')
    for r in range(0, 16, 2):
        p(f'v_pk_mul_f32 {vr(TC+r,2)}, {vr(TC+r,2)}, s[46:47] op_sel_hi:[1,0]')
        p(f'v_pk_mul_f32 {vr(TS+r,2)}, {vr(TS+r,2)}, s[46:47] op_sel_hi:[1,0]')
    p('v_lshrrev_b32 v20, 3, v1'); p('v_lshlrev_b32 v20, 7, v20')
    p('v_lshrrev_b32 v21, 4, v1'); p('v_and_b32 v22, 7, v1'); p('v_xor_b32 v21, v21, v22'); p('v_lshlrev_b32 v21, 4, v21')
    p('v_add_u32 v2, v20, v21'); p('v_xor_b32 v3, 64, v2')
    p(f's_mul_i32 s41, s2, {LP}'); p('s_lshl_b32 s42, s40, 12'); p('s_add_u32 s43, s41, s42')
    p('v_lshlrev_b32 v9, 4, v1'); p('v_add_u32 v10, s42, v9')
    p('v_lshrrev_b32 v20, 5, v1'); p('v_lshlrev_b32 v20, 12, v20')
    p('s_lshl_b32 s44, s40, 5'); p(f's_add_u32 s44, s44, {128*128+16}')
    p('v_sub_u32 v4, s44, v20')
    p(f'v_add_u32 v5, {-64*128 & 0xffffffff}, v4')
    p('v_lshlrev_b32 v20, 7, v1')
    p('s_lshl_b32 s45, s40, 1')
    p('v_bfe_u32 v21, v1, 1, 3'); p('v_xor_b32 v21, s45, v21'); p('v_lshlrev_b32 v21, 4, v21')
    p('v_add_u32 v6, v20, v21')
    p('v_sub_u32 v20, 32, v1'); p('v_and_b32 v20, 31, v20')
    p('v_lshrrev_b32 v22, 5, v1'); p('v_xor_b32 v22, 1, v22'); p('v_lshlrev_b32 v22, 5, v22'); p('v_add_u32 v22, v22, v20')
    p('v_lshlrev_b32 v22, 7, v22')
    p('s_or_b32 s45, s45, 1'); p('v_bfe_u32 v21, v20, 1, 3'); p('v_xor_b32 v21, s45, v21'); p('v_lshlrev_b32 v21, 4, v21')
    p('v_add_u32 v7, v22, v21')
    p('s_lshr_b32 s46, s2, 5'); p('s_lshl_b32 s46, s46, 2'); p('s_add_u32 s46, s46, s40'); p('s_lshl_b32 s46, s46, 5')
    p('s_and_b32 s47, s2, 31'); p('s_add_u32 s46, s46, s47'); p('s_lshl_b32 s46, s46, 13'); p('s_add_u32 s46, s46, 2048')
    p('s_add_u32 s47, s46, 4096')
    p('v_and_b32 v20, 31, v1'); p('v_lshlrev_b32 v20, 6, v20'); p('v_lshrrev_b32 v21, 5, v1'); p('v_lshlrev_b32 v21, 4, v21'); p('v_add_u32 v8, v20, v21')
    p('v_and_b32 v20, 31, v1'); p('v_cmp_eq_u32 s[48:49], 0, v20')
    p(f'v_mov_b32 v{VZERO}, 0')
    p(f's_mov_b32 s58, {FL_2}')
    c.stamp('tab3')
    def body():
        ld = [f'buffer_load_dword v{20+k}, v9, s[{FLS}:{FLS+3}], s58 offen offset:{k*1024}{SC}' for k in range(2)]
        ld.append(f'buffer_load_dword v22, v{VZERO}, s[{FLS}:{FLS+3}], s58 offen offset:2048{SC}')
        ck = ['v_and_b32 v20, v20, v21', 'v_and_b32 v20, v20, v22', 'v_cmp_ne_u32 vcc, 1, v20']
        raw_spin(c, ld, ck)
    sync_wave0(c, body, 0)
    p('s_barrier')
    c.stamp('f2ok')
    for k in range(4):
        p(f'buffer_load_dwordx4 {vr(R+4*k,4)}, v{2+(k&1)}, s[24:27], s43 offen' + (f' offset:{1024*k}' if k else '') + SC, tag='x')
    p(f'buffer_load_dword v{FX}, v4, s[24:27], s41 offen{SC}', tag='fx')
    p(f'buffer_load_dword v{FX+1}, v5, s[24:27], s41 offen{SC}', tag='fx')
    for k in range(4):
        p(f'ds_write_b128 v10, {vr(R+4*k,4)} offset:{k*1024}')
    p.barrier()
    c.stamp('x3')
    p(f'ds_read_b128 {vr(D,4)}, v6'); p(f'ds_read_b128 {vr(D+4,4)}, v6 offset:8192')
    p(f'ds_read_b128 {vr(D+8,4)}, v7 offset:8192'); p(f'ds_read_b128 {vr(D+12,4)}, v7')
    p(f'v_cndmask_b32 v{D+8}, v{D+8}, v{FX}, s[48:49]')
    p(f'v_cndmask_b32 v{D+12}, v{D+12}, v{FX+1}, s[48:49]')
    for m in st1(D, FR, FI, R, I_): p(m)
    for o in tw_ops(R, I_, TC, TS, T, D): p(o)
    for t in range(4):
        p(f'v_mfma_f32_32x32x16_bf16 {vr(R,16)}, {vr(D+4*t,4)}, {vr(FR+4*t,4)}, {"0" if t == 0 else vr(R,16)}')
        p(f'v_mfma_f32_32x32x16_bf16 {vr(I_,16)}, {vr(D+4*t,4)}, {vr(FI+4*t,4)}, {"0" if t == 0 else vr(I_,16)}')
    O = 144
    for n, (a, so) in enumerate(((I_, 46), (R, 47))):
        for gp in range(2):
            o = O + (n*2 + gp)*4
            for g in range(2):
                r = a + 8*gp + 4*g
                p(f'v_cvt_pk_bf16_f32 v{o+2*g}, v{r}, v{r+1}')
                p(f'v_cvt_pk_bf16_f32 v{o+2*g+1}, v{r+2}, v{r+3}')
            p(f'v_permlane32_swap_b32 v{o}, v{o+2}')
            p(f'v_permlane32_swap_b32 v{o+1}, v{o+3}')
            p(f'buffer_store_dwordx4 {vr(o,4)}, v8, s[32:35], s{so} offen' + (f' offset:{gp*32}' if gp else '') + SCO)
    c.finish()

def build(path, stamp=False, head="", only=None, **kw):
    m = Module()
    kname = NAME + '_kernel'
    p = Prog()
    load_ptrs(p)
    p('s_mov_b32 s68, s2')
    p('s_cmp_lt_u32 s2, 256')
    p('s_cbranch_scc1 role_a')
    p('s_cmp_lt_u32 s2, 512')
    p('s_cbranch_scc1 role_b')
    p('s_endpgm')
    names = {}
    for lab, gen, base in (('role_b', gen_B, 256), ('role_a', gen_A, 0)):
        p.raw(f'{lab}:'); p.reset()
        p('s_waitcnt lgkmcnt(0)')
        if base: p(f's_sub_u32 s2, s2, {base}')
        c = Ctx(p, stamp); c.lab = 1000 if base else 0
        c.stamp('start')
        if gen is gen_A: gen(c, **kw)
        else: gen(c)
        names[lab] = c.names
    m.add_kernel(kname, p, verbose=True)
    txt = m.text(head)
    txt = txt.replace('.amdgcn_target', '; @launch grid=(512,1,1) block=(256,1,1) lds=81920\n.amdgcn_target', 1)
    open(path, 'w').write(txt)
    return names
if __name__ == '__main__':
    import json
    HEAD = "\n".join(l[2:] if l.startswith('; ') else l[1:] for l in open('cdna_kernels/%s.s.ref' % NAME).read().split('\n') if l.startswith(';') and '@launch' not in l and 'Override launch' not in l and 'default: block' not in l and 'grid=ceil' not in l)
    build('s.s', head=HEAD)
    n = build('ss.s', stamp=True, head=HEAD)
    json.dump(n, open('ss.json', 'w'))
    print(n)
```
